```python
import torch

def _softmax(x, axis=-1):
    return torch.softmax(x, dim=axis)
def _gelu(x):
    return torch.nn.functional.gelu(x, approximate="tanh")
def _silu(x):
    return torch.nn.functional.silu(x)
def _sigmoid(x):
    return torch.sigmoid(x)
def _layernorm(x, axis=-1, eps=1e-5):
    m = x.mean(dim=axis, keepdim=True)
    v = x.var(dim=axis, keepdim=True, unbiased=False)
    return (x - m) / torch.sqrt(v + eps)
def _scatter_add(tgt, idx, src, axis=0):
    return tgt.clone().index_add_(axis, idx, src)
def _segment_sum(src, seg, n):
    out = torch.zeros((n,) + src.shape[1:], dtype=src.dtype)
    return out.index_add_(0, seg, src)
def _pad(x, pw):
    flat = tuple(v for pair in reversed(pw) for v in pair)
    return torch.nn.functional.pad(x, flat)

kernel_name = 'recurrent_scan__compressed_kv_cla__mixer_channel_mlp__decode'

def setup_inputs():

    _w = (lambda a: (lambda t: t.to(torch.bfloat16) if t.is_floating_point() else t)(torch.as_tensor(a)))
    def _A_setup():
        B, H, Sq, Sk, D, M = 2, 32, 1, 8192, 128, 576
        Dc = 4 * D
        return {
            "x": _w((lambda *s: torch.randn(*s, dtype=torch.bfloat16) * 0.1)(B, Sq, M)),
            "c_kv": _w((lambda *s: torch.randn(*s, dtype=torch.bfloat16) * 3.2)(B, Sk, Dc)),
            "w_q": _w((lambda *s: torch.randn(*s, dtype=torch.bfloat16) * 0.8)(M, H, D) * (M ** -0.5)),
            "w_uk": _w((lambda *s: torch.randn(*s, dtype=torch.bfloat16) * 0.8)(Dc, H, D) * (Dc ** -0.5)),
            "w_uv": _w((lambda *s: torch.randn(*s, dtype=torch.bfloat16) * 3.2)(Dc, H, D) * (Dc ** -0.5)),
            "w_o": _w((lambda *s: torch.randn(*s, dtype=torch.bfloat16) * 3.2)(H, D, M) * ((H * D) ** -0.5)),
        }
    _A_in = _A_setup()

    def _B_setup():
        B, S, D, F = 2, 1, 576, 4608
        return {
            "x": _w((lambda *s: torch.randn(*s, dtype=torch.bfloat16) * 0.1)(B, S, D)),
            "w1": _w((lambda *s: torch.randn(*s, dtype=torch.bfloat16) * 3.2)(D, F) * (D ** -0.5)),
            "b1": _w((lambda *s: torch.randn(*s, dtype=torch.bfloat16) * 3.2)(F)),
            "w2": _w((lambda *s: torch.randn(*s, dtype=torch.bfloat16) * 3.2)(F, D) * (F ** -0.5)),
            "b2": _w((lambda *s: torch.randn(*s, dtype=torch.bfloat16) * 3.2)(D)),
        }
    _B_in = _B_setup()

    return {
        "A_x": _A_in["x"],
        "A_c_kv": _A_in["c_kv"],
        "A_w_q": _A_in["w_q"],
        "A_w_uk": _A_in["w_uk"],
        "A_w_uv": _A_in["w_uv"],
        "A_w_o": _A_in["w_o"],
        "B_x": _B_in["x"],
        "B_w1": _B_in["w1"],
        "B_b1": _B_in["b1"],
        "B_w2": _B_in["w2"],
        "B_b2": _B_in["b2"],
    }

def reference(A_x, A_c_kv, A_w_q, A_w_uk, A_w_uv, A_w_o, B_x, B_w1, B_b1, B_w2, B_b2):
    def _A_ref(x, c_kv, w_q, w_uk, w_uv, w_o):
        B, Sq, M = x.shape[0], x.shape[1], x.shape[2]
        Sk = c_kv.shape[1]
        H, D = w_q.shape[1], w_q.shape[2]
        q = torch.einsum("bqm,mhd->bhqd", x, w_q)
        k = torch.einsum("bkc,chd->bhkd", c_kv, w_uk)
        v = torch.einsum("bkc,chd->bhkd", c_kv, w_uv)
        scores = torch.einsum("bhqd,bhkd->bhqk", q, k) * (D ** -0.5)
        off = Sk - Sq
        qi = torch.arange(Sq)[:, None]
        kj = torch.arange(Sk)[None, :]
        cmask = kj <= (qi + off)
        scores = torch.where(cmask[None, None], scores, -1e9)
        p = _softmax(scores, axis=-1)
        ctx = torch.einsum("bhqk,bhkd->bhqd", p, v)
        return torch.einsum("bhqd,hdm->bqm", ctx, w_o)

    def _B_ref(x, w1, b1, w2, b2):
        y = _layernorm(x, axis=-1)
        h = _gelu(torch.einsum("bsd,df->bsf", y, w1) + b1)
        return torch.einsum("bsf,fd->bsd", h, w2) + b2

    x = A_x
    xn = _layernorm(x, axis=-1)
    s = _A_ref(xn, A_c_kv, A_w_q, A_w_uk, A_w_uv, A_w_o)
    g = _silu(_B_ref(xn, B_w1, B_b1, B_w2, B_b2))
    return x + s * g
```

```python
import re

TRANS = ("v_exp_f32", "v_log_f32", "v_rcp_f32", "v_rsq_f32", "v_sqrt_f32", "v_sin_f32", "v_cos_f32")

def regs_of(tok):
    tok = tok.strip()
    neg = tok.lstrip("-")
    m = re.fullmatch(r"abs\((.*)\)", neg)
    if m: neg = m.group(1)
    m = re.fullmatch(r"\|(.*)\|", neg)
    if m: neg = m.group(1)
    m = re.fullmatch(r"([vas])(\d+)", neg)
    if m: return {(m.group(1), int(m.group(2)))}
    m = re.fullmatch(r"([vas])\[(\d+):(\d+)\]", neg)
    if m: return {(m.group(1), i) for i in range(int(m.group(2)), int(m.group(3)) + 1)}
    if neg in ("vcc", "vcc_lo", "vcc_hi"): return {("s", "vcc")}
    if neg in ("exec", "exec_lo", "exec_hi"): return {("s", "exec")}
    if neg == "m0": return {("s", "m0")}
    return set()

class Ins:
    def __init__(self, text):
        self.text = text
        t = text.split(";")[0].strip()
        self.label = t.endswith(":")
        self.directive = t.startswith(".") and not self.label
        self.empty = (t == "")
        self.op = ""; self.defs = set(); self.uses = set(); self.cls = None
        self.A = self.B = self.C = set(); self.states = 0
        if self.label or self.directive or self.empty: return
        parts = t.split(None, 1)
        self.op = op = parts[0]
        rest = parts[1] if len(parts) > 1 else ""
        ops = [o.strip() for o in re.split(r",(?![^\[]*\])", rest)] if rest else []
        mods = ""
        if ops:
            sp = ops[-1].split(None, 1)
            if len(sp) > 1: ops[-1], mods = sp[0], sp[1]
        self.ops = ops; self.mods = mods
        R = [regs_of(o) for o in ops]
        self.states = 1
        if op == "s_nop": self.states = int(ops[0], 0) + 1; self.cls = "salu"; return
        if op.startswith("v_mfma") or op.startswith("v_smfmac"):
            self.cls = "mfma"; self.defs = R[0]; self.A, self.B = R[1], R[2]
            if op.startswith("v_smfmac"):
                self.C = R[0]; self.B = self.B | R[3]
            else: self.C = R[3]
            self.uses = self.A | self.B | self.C
            self.passes = 8 if "32x32" in op else 4
            if "smfmac" in op: self.passes = 8
        elif op.startswith("v_"):
            self.cls = "valu"
            self.defs = set(R[0]); self.uses = set().union(*R[1:]) if len(R) > 1 else set()
            if "permlane" in op and "swap" in op: self.defs = R[0] | R[1]; self.uses = R[0] | R[1]
            if op.startswith(("v_fmac", "v_pk_fmac", "v_dot2c", "v_writelane")): self.uses |= R[0]
            if "_co_" in op: self.defs |= R[1]
            if op.startswith("v_cmpx"): self.defs |= {("s", "exec")}
            self.dpp = "_dpp" in op or "row_" in mods or "quad_perm" in mods
            self.trans = op.replace("_e32", "").replace("_e64", "") in TRANS
        elif op.startswith("ds_"):
            self.cls = "ds"
            if op.startswith(("ds_read", "ds_bpermute", "ds_permute", "ds_swizzle")):
                self.defs = R[0]; self.uses = set().union(*R[1:])
            else: self.uses = set().union(*R)
        elif op.startswith(("buffer_", "global_")):
            self.cls = "vmem"
            self.lds = bool(re.search(r"\blds\b", mods)) or "load_lds" in op
            if "load" in op and not self.lds:
                self.defs = R[0]; self.uses = set().union(*R[1:])
            else: self.uses = set().union(*R)
            if self.lds: self.uses |= {("s", "m0")}
            self.widestore = "store" in op and op.endswith(("x3", "x4"))
            self.data = R[0] if "store" in op else set()
        elif op.startswith("s_"):
            self.cls = "salu"
            if op.startswith(("s_cmp", "s_cbranch", "s_branch", "s_waitcnt", "s_barrier", "s_endpgm", "s_setprio", "s_sleep", "s_bitcmp")):
                self.uses = set().union(*R) if R else set()
            else:
                self.defs = set(R[0]) if R else set(); self.uses = set().union(*R[1:]) if len(R) > 1 else set()
                if "saveexec" in op: self.defs |= {("s", "exec")}
        else:
            raise ValueError("unknown op " + text)

def vec(s): return {r for r in s if r[0] in "va"}
def sca(s): return {r for r in s if r[0] == "s"}

def need(p, c):
    n = 0
    if p.cls == "valu":
        pv = vec(p.defs); ps = sca(p.defs)
        if c.cls == "mfma" and pv & c.uses: n = max(n, 2)
        if c.cls == "mfma" and ("s", "exec") in ps: n = max(n, 4)
        if c.cls == "valu":
            if pv & c.uses:
                if "permlane" in c.op: n = max(n, 2)
                if c.dpp: n = max(n, 2)
                if c.op.startswith(("v_readlane", "v_readfirstlane")): n = max(n, 1)
                if p.trans and not c.trans: n = max(n, 1)
                if p.trans and c.trans: n = max(n, 1)
            if ps & c.uses:
                n = max(n, 4 if c.op.startswith(("v_readlane", "v_writelane")) else 2)
        if c.cls == "vmem" and ps & c.uses: n = max(n, 5)
        if c.cls == "salu" and ps & c.uses: n = max(n, 1)
    if p.cls == "mfma":
        big = {4: 8, 8: 12}[p.passes]; part = {4: 6, 8: 10}[p.passes]; war = {4: 3, 8: 7}[p.passes]
        if c.cls == "mfma":
            if p.defs & (c.A | c.B): n = max(n, big)
            if p.defs & c.C:
                if not (p.defs == c.C and p.passes == c.passes and p.op == c.op): n = max(n, part)
            elif p.defs & c.defs: n = max(n, big)
        elif c.cls in ("valu", "ds", "vmem"):
            if p.defs & (c.uses | c.defs): n = max(n, big)
            if c.cls == "valu" and p.C & c.defs: n = max(n, war)
    if p.cls == "salu" and ("s", "m0") in p.defs and c.cls == "vmem" and c.lds: n = max(n, 1)
    if p.cls == "vmem" and getattr(p, "widestore", False) and c.cls in ("valu", "mfma") and p.data & c.defs: n = max(n, 2)
    if p.cls == "vmem" and getattr(p, "widestore", False) and c.cls in ("ds", "vmem") and p.data & c.defs: n = max(n, 1)
    return n

class Asm:
    def __init__(self):
        self.ins = []
        self.padded = 0
    def __call__(self, text):
        for line in text.split("\n"):
            line = line.strip()
            if not line: continue
            self.emit(line)
    def emit(self, line):
        c = Ins(line)
        if c.cls:
            dist = 0; req = 0
            for p in reversed(self.ins):
                if not p.cls: continue
                if p.op in ("s_branch", "s_endpgm", "s_setpc_b64"): break
                k = need(p, c) - dist
                if k > req: req = k
                dist += p.states
                if dist >= 20: break
            if req > 0:
                self.ins.append(Ins(f"s_nop {req - 1}")); self.padded += req
        self.ins.append(c)
    def text(self):
        out = []
        for i in self.ins:
            out.append(i.text if (i.label or i.directive) else "    " + i.text)
        return "\n".join(out) + "\n"
```

```python
import sys, math
from asmlib import Asm

NAME = "recurrent_scan__compressed_kv_cla__mixer_channel_mlp__decode"
K = NAME + "_kernel"
HEADER = open("cdna_kernels/" + NAME + ".s.ref").read().split("; Override launch geometry")[0] if False else ""

WS_BYTES = 268435456
SPIN = 1 << 17

def f32(x):
    import struct
    return "0x%08x" % struct.unpack("<I", struct.pack("<f", x))[0]

def gen(stamps=False, wsb=0, touch_uk=True, nt="nt"):
    WS_EPOCH = wsb
    WS_Q = wsb + 4096
    WS_H3 = wsb + 0x40000
    WS_HM = WS_H3 + 128 * 24576
    WS_H5M = WS_HM + 128 * 6144
    WS_H5S = WS_H5M + 96 * 8192
    STAMP_OFF = 255 << 20
    e = Asm()
    nst = [0]
    def stamp(k):
        if stamps: e(f"s_memrealtime s[{64 + 2 * k}:{65 + 2 * k}]")
    def srd(n, size):
        e(f"s_mov_b32 s{n + 2}, {size}\ns_mov_b32 s{n + 3}, 0x20000")
    sX, sU, sW, sT = "s3", "s33", "s34", "s36"
    TP = "s[36:37]"
    def rbf(dst, src):
        e(f"v_cvt_pk_bf16_f32 {dst}, {src}, {src}\nv_and_b32 {dst}, 0xffff0000, {dst}")
    def make_tag():
        e(f"s_mul_i32 s36, s35, 0x41c64e6d\ns_add_u32 s36, s36, 0x3c6ef35f\ns_mul_i32 s37, s36, 0x2c9277b5\ns_add_u32 s37, s37, 0xac564b05")
    def red16(v0, t):
        e(f"""v_permlane32_swap_b32 v{v0}, v{v0+2}
              v_permlane32_swap_b32 v{v0+1}, v{v0+3}
              v_add_f32 v{v0}, v{v0}, v{v0+2}
              v_add_f32 v{v0+1}, v{v0+1}, v{v0+3}
              v_permlane16_swap_b32 v{v0}, v{v0+1}
              v_add_f32 v{v0}, v{v0}, v{v0+1}
              v_add_f32_dpp v{v0}, v{v0}, v{v0} row_ror:4 row_mask:0xf bank_mask:0xf
              v_add_f32_dpp v{v0}, v{v0}, v{v0} row_ror:8 row_mask:0xf bank_mask:0xf""")
    def d9_addrs(vlin, vrow_out, mul, shift, vt):
        e(f"v_lshrrev_b32 v{vt}, 3, v1\nv_lshlrev_b32 v{vt+1}, 4, v1\ns_mov_b32 s50, {mul}")
        for i in range(9):
            e(f"""v_add_u32 v{vt+2}, {8 * i}, v{vt}
                  v_mul_u32_u24 v{vt+2}, 57, v{vt+2}
                  v_bfe_u32 v{vt+3}, v{vt+2}, 10, 2
                  v_lshlrev_b32 v{vt+3}, 5, v{vt+3}
                  v_xor_b32 v{vt+3}, v{vt+3}, v{vt+1}""")
            dst = vlin + i if vlin is not None else vt + 3
            if (i >> 2): e(f"v_add_u32 v{dst}, {(i >> 2) * 4096}, v{vt+3}")
            elif vlin is not None: e(f"v_mov_b32 v{dst}, v{vt+3}")
            e(f"v_lshrrev_b32 v{vt+2}, {9 + shift}, v{vt+2}\nv_mad_u32_u24 v{vrow_out + i}, v{vt+2}, s50, v{dst}")
    def dma9(va, srdn, soff, m0, n=9):
        for i in range(n):
            if i == 0: e(f"s_mov_b32 m0, {m0}")
            elif i % 4 == 0: e(f"s_add_u32 m0, m0, 4096")
            off = f" offset:{(i & 3) * 1024}" if i & 3 else ""
            e(f"buffer_load_dwordx4 v{va + i}, s[{srdn}:{srdn+3}], {soff} offen{off} {nt} lds")
    def t9_addrs(vT, vT16, base16, vt):
        e(f"""v_lshrrev_b32 v{vt}, 2, v1            ; 4g+r
              v_bfe_u32 v{vt+1}, v1, 3, 2            ; sw = 2(g&1)+(r>>1)
              v_and_b32 v{vt+2}, 3, v1
              v_lshlrev_b32 v{vt+2}, 3, v{vt+2}      ; 8*(l&3)
              v_mul_u32_u24 v{vt+3}, 1152, v{vt}
              v_add_u32 v{vt+3}, v{vt+3}, v{vt+2}
              v_and_b32 v{vt}, 3, v{vt}              ; r
              v_mul_u32_u24 v{vt+4}, 1152, v{vt}
              v_add_u32 v{vt+4}, v{vt+4}, v{vt+2}
              v_add_u32 v{vt+4}, {base16 + 32 * 1152}, v{vt+4}
              v_lshrrev_b32 v{vt}, 1, v{vt}          ; r>>1
              s_mul_i32 s50, {sW}, 9""")
        for m in range(4):
            e(f"""s_and_b32 s51, s50, 3
                  s_lshr_b32 s52, s50, 2
                  s_lshl_b32 s52, s52, 7
                  v_xor_b32 v{vt+2}, s51, v{vt+1}
                  v_lshl_add_u32 v{vt+2}, v{vt+2}, 5, v{vt+3}
                  v_add_u32 v{vT+m}, s52, v{vt+2}
                  v_xor_b32 v{vt+2}, s51, v{vt}
                  v_lshl_add_u32 v{vt+2}, v{vt+2}, 5, v{vt+4}
                  v_add_u32 v{vT16+m}, s52, v{vt+2}
                  s_add_u32 s50, s50, 1""")
    def gemv36(vT, off, vT16, vact, vfr, vacc, vrec, vst, astride):
        e(f"ds_read2_b64 v[{vrec}:{vrec+3}], v{vact} offset1:4")
        e(f"v_and_b32 v{vrec+6}, 48, v1\nv_lshrrev_b32 v{vrec+6}, 1, v{vrec+6}\nv_sub_u32 v{vrec+6}, v{vact}, v{vrec+6}")
        e(f"ds_read_b64 v[{vrec+4}:{vrec+5}], v{vrec+6} offset:64")
        for t in range(9):
            m, z = t & 3, t >> 2
            e(f"ds_read_b64_tr_b16 v[{vfr+6*t}:{vfr+6*t+1}], v{vT+m} offset:{off + z * 128}")
            e(f"ds_read_b64_tr_b16 v[{vfr+6*t+2}:{vfr+6*t+3}], v{vT+m} offset:{off + 18432 + z * 128}")
            e(f"ds_read_b64_tr_b16 v[{vfr+6*t+4}:{vfr+6*t+5}], v{vT16+m} offset:{z * 128}")
        e(f"v_cmp_gt_u32 vcc, 16, v1\ns_waitcnt lgkmcnt(0)")
        e(f"v_cndmask_b32 v{vrec+4}, 0, v{vrec+4}, vcc\nv_cndmask_b32 v{vrec+5}, 0, v{vrec+5}, vcc")
        for t in range(9):
            e(f"v_mfma_f32_16x16x32_bf16 v[{vacc+4*t}:{vacc+4*t+3}], v[{vrec}:{vrec+3}], v[{vfr+6*t}:{vfr+6*t+3}], 0")
        for t in range(9):
            e(f"v_mfma_f32_16x16x16_bf16 v[{vacc+4*t}:{vacc+4*t+3}], v[{vrec+4}:{vrec+5}], v[{vfr+6*t+4}:{vfr+6*t+5}], v[{vacc+4*t}:{vacc+4*t+3}]")
        e("s_mov_b32 exec_hi, 0")
        for a in range(3):
            g = vrec + 8 + 4 * a
            for t in range(3): e(f"v_mov_b32 v{g+t}, v{vacc + 4 * (3 * a + t)}")
            e(f"v_mov_b32 v{g+3}, {sT}\ns_mov_b32 s50, {a * astride}")
            e(f"buffer_store_dwordx4 v[{g}:{g+3}], v{vst}, s[4:7], s50 offen sc1")
        e("s_mov_b32 exec_hi, -1")
    def h5_store_addr(vst, base, vt):
        e(f"""v_bfe_u32 v{vt}, v1, 2, 3              ; b*4+q
              v_and_b32 v{vt+1}, 3, v1
              v_lshlrev_b32 v{vt}, 13, v{vt}
              v_lshl_add_u32 v{vt}, v{vt+1}, 4, v{vt}
              s_mul_i32 s50, {sW}, {24 * 8192}
              s_lshl_b32 s51, {sX}, 10
              s_lshl_b32 s52, {sU}, 6
              s_add_u32 s50, s50, s51
              s_add_u32 s50, s50, s52
              s_add_u32 s50, s50, {base}
              v_add_u32 v{vst}, s50, v{vt}""")

    e(f"{K}:")
    stamp(0)
    e(f"""s_load_dwordx2 s[4:5], s[0:1], 104
          s_load_dwordx2 s[12:13], s[0:1], 24
          s_load_dwordx2 s[28:29], s[0:1], 0
          s_cmp_ge_u32 s2, 256
          s_cbranch_scc1 L_end
          v_lshrrev_b32 v2, 6, v0
          v_and_b32 v1, 63, v0
          s_and_b32 {sX}, s2, 7
          v_readfirstlane_b32 {sW}, v2
          s_lshr_b32 {sU}, s2, 4
          s_lshr_b32 s38, {sU}, 2
          s_lshl2_add_u32 s38, {sX}, s38
          s_and_b32 s39, {sU}, 3                  ; j""")
    srd(4, WS_BYTES); srd(12, 512 * 8192); srd(28, 2304)
    e("s_bitcmp1_b32 s2, 3\ns_cbranch_scc1 L_qv")

    QX, PX, MX, LX, HX, FX = 131072, 147456, 151552, 151808, 152064, 152320
    vDA = 8
    e(f"""s_load_dwordx2 s[8:9], s[0:1], 8
          s_lshr_b32 s48, {sU}, 1
          s_lshl3_add_u32 s48, {sX}, s48          ; cidx
          s_and_b32 s49, {sU}, 1                  ; hh
          v_lshlrev_b32 v3, 4, v1
          s_lshl_b32 s50, s48, 18
          s_lshl_b32 s51, {sW}, 14
          s_add_u32 s50, s50, s51
          s_lshl_b32 s51, s49, 17
          s_add_u32 s44, s50, s51
          s_xor_b32 s45, s44, 0x20000
          s_lshl_b32 s46, {sW}, 15""")
    srd(8, 2 * 8192 * 1024)
    FT = [2 * ((r & 7) ^ (4 * (r >> 3))) + (r >> 3) for r in range(16)]
    for r in range(16):
        e(f"v_xor_b32 v{vDA + r}, {FT[r] * 16 + (r >> 2) * 4096}, v3")
    if touch_uk:
        e(f"""v_lshrrev_b32 v4, 1, v0
              v_and_b32 v5, 1, v0
              v_lshlrev_b32 v4, 13, v4
              v_lshl_add_u32 v4, v5, 7, v4
              s_lshl_b32 s50, s39, 20
              s_lshl_b32 s51, s38, 8
              s_add_u32 s50, s50, s51""")
    e("s_waitcnt lgkmcnt(0)")
    e(f"s_load_dword s35, s[4:5], {WS_EPOCH}" if WS_EPOCH < (1 << 20) else f"s_mov_b32 s51, {WS_EPOCH}\ns_load_dword s35, s[4:5], s51")
    if touch_uk: e(f"buffer_load_dword v5, v4, s[12:15], s50 offen {nt}")
    def slot_dma(soff, m0expr):
        for r in range(16):
            if r == 0: e(m0expr)
            elif r % 4 == 0: e("s_add_u32 m0, m0, 4096")
            off = f" offset:{(r & 3) * 1024}" if r & 3 else ""
            e(f"buffer_load_dwordx4 v{vDA + r}, s[8:11], {soff} offen{off} {nt} lds")
    e("s_mov_b32 s47, s46\nL_kv_ld:")
    slot_dma("s44", "s_mov_b32 m0, s47")
    e(f"""s_add_u32 s44, s44, 0x10000
          s_xor_b32 s47, s47, 0x4000
          s_cmp_lg_u32 s47, s46
          s_cbranch_scc1 L_kv_ld
          s_branch L_kv2""")

    R0, R1, R2, R3 = 0, 36864, 73728, 110592
    XN, YN, QQ, CX = 152576, 157184, 159488, 160000
    vDQ, vTR = 4, 8
    e("L_qv:")
    e(f"""s_load_dwordx2 s[8:9], s[0:1], 16
          v_lshrrev_b32 v2, 4, v1                 ; g
          s_and_b32 s50, {sW}, 1
          s_lshl_b32 s50, s50, 3
          v_lshl_add_u32 v3, v2, 1, s50
          v_xor_b32 v3, v3, v1
          v_and_b32 v3, 15, v3
          v_lshlrev_b32 v3, 4, v3
          v_lshl_add_u32 v3, v2, 13, v3
          s_lshl_b32 s50, {sW}, 15
          s_lshl_b32 s51, s38, 8
          s_add_u32 s50, s50, s51
          v_add_u32 v{vDQ}, s50, v3
          v_add_u32 v{vDQ+1}, {131072 - 1024}, v{vDQ}
          s_mul_i32 s48, s39, 9
          s_add_u32 s48, s48, 1
          s_lshr_b32 s48, s48, 1
          s_lshl_b32 s44, s48, 18
          s_lshl_b32 s46, {sW}, 11
          v_lshrrev_b32 v6, 5, v1
          v_and_b32 v7, 31, v1
          v_mul_u32_u24 v7, 36, v7
          s_movk_i32 s50, 1152
          v_mad_u32_u24 v16, v6, s50, v7""")
    srd(8, 576 * 8192)
    e("s_waitcnt lgkmcnt(0)")
    e(f"s_load_dword s35, s[4:5], {WS_EPOCH}" if WS_EPOCH < (1 << 20) else f"s_mov_b32 s51, {WS_EPOCH}\ns_load_dword s35, s[4:5], s51")
    e(f"""s_cmp_lg_u32 {sW}, 0
          s_cbranch_scc1 L_qv_nox
          buffer_load_dwordx3 v[20:22], v16, s[28:31], 0 offen
          buffer_load_dwordx3 v[24:26], v16, s[28:31], 0 offen offset:12
          buffer_load_dwordx3 v[28:30], v16, s[28:31], 0 offen offset:24
          L_qv_nox:
          s_mov_b32 s47, s46
          L_qv_ld:
          s_mov_b32 m0, s47
          s_add_u32 s47, s47, 8192
          buffer_load_dwordx4 v{vDQ}, s[8:11], s44 offen {nt} lds
          buffer_load_dwordx4 v{vDQ+1}, s[8:11], s44 offen offset:1024 {nt} lds
          s_add_u32 s44, s44, 0x40000
          s_cmp_eq_u32 s44, {18 << 18}
          s_cselect_b32 s44, 0, s44
          s_cmp_eq_u32 s47, {4 * 8192}
          s_cbranch_scc1 L_ln
          L_ln_back:
          s_cmp_lt_u32 s47, {18 * 8192}
          s_cbranch_scc1 L_qv_ld
          s_branch L_qv2""")
    e("L_ln:")
    xs = [20, 21, 22, 24, 25, 26, 28, 29, 30]
    F = 64
    e(f"""v_mad_u32_u24 v17, v6, s50, v16
          v_add_u32 v17, {XN}, v17
          s_mov_b32 s51, 0
          s_waitcnt vmcnt(8)
          L_ln_loop:""")
    for i, r in enumerate(xs):
        e(f"v_lshlrev_b32 v{F+2*i}, 16, v{r}\nv_and_b32 v{F+2*i+1}, 0xffff0000, v{r}")
    def allred32(v, t):
        for s_ in (8, 4, 2, 1):
            e(f"v_add_f32_dpp v{v}, v{v}, v{v} row_ror:{s_} row_mask:0xf bank_mask:0xf")
        e(f"v_mov_b32 v{t}, v{v}\nv_permlane16_swap_b32 v{v}, v{t}\nv_add_f32 v{v}, v{v}, v{t}")
    e(f"v_add_f32 v18, v{F}, v{F+1}")
    for i in range(2, 18): e(f"v_add_f32 v18, v18, v{F+i}")
    allred32(18, 19)
    e(f"v_mul_f32 v18, {f32(1 / 576)}, v18        ; mean")
    for i in range(18):
        e(f"v_sub_f32 v23, v{F+i}, v18")
        e(f"v_mul_f32 v27, v23, v23" if i == 0 else "v_fmac_f32 v27, v23, v23")
    allred32(27, 19)
    e(f"v_mul_f32 v27, {f32(1 / 576)}, v27")
    rbf("v18", "v18"); rbf("v27", "v27")
    e(f"v_add_f32 v27, {f32(1e-5)}, v27")
    rbf("v27", "v27")
    e("v_sqrt_f32 v27, v27")
    rbf("v27", "v27")
    e("v_rcp_f32 v27, v27")
    for i, r in enumerate(xs):
        a, b = F + 2 * i, F + 2 * i + 1
        e(f"""v_sub_f32 v{a}, v{a}, v18
              v_sub_f32 v{b}, v{b}, v18
              v_cvt_pk_bf16_f32 v{r}, v{a}, v{b}
              v_lshlrev_b32 v{a}, 16, v{r}
              v_and_b32 v{b}, 0xffff0000, v{r}
              v_mul_f32 v{a}, v{a}, v27
              v_mul_f32 v{b}, v{b}, v27
              v_cvt_pk_bf16_f32 v{r}, v{a}, v{b}
              ds_write_b32 v17, v{r} offset:{4 * i}""")
    e("s_cmp_lg_u32 s51, 0\ns_cbranch_scc1 L_ln_back")
    for i, r in enumerate(xs): e(f"ds_write_b32 v17, v{r} offset:{1152 + 4 * i}")
    e(f"v_add_u32 v17, {YN}, v16\ns_mov_b32 s51, 1\ns_branch L_ln_loop")

    e("L_qv2:")
    vUK = 32
    e(f"""s_load_dwordx2 s[16:17], s[0:1], 40
          s_load_dwordx2 s[20:21], s[0:1], 32
          s_load_dwordx2 s[24:25], s[0:1], 56
          v_bfe_u32 v6, v1, 2, 2                  ; gamma = (l&15)>>2
          v_and_b32 v7, 3, v1
          v_lshl_add_u32 v7, v6, 3, v7            ; 8*gamma + r
          v_lshlrev_b32 v7, 13, v7
          v_lshl_add_u32 v7, v2, 4, v7
          s_lshl_b32 s50, s39, 20
          s_lshl_b32 s51, {sW}, 18
          s_add_u32 s50, s50, s51
          s_lshl_b32 s51, s38, 8
          s_add_u32 s50, s50, s51
          s_add_u32 s51, s50, 0x8000""")
    for ee in range(2):
        for k in range(4):
            r = vUK + (ee * 4 + k) * 4
            e(f"buffer_load_dwordx4 v[{r}:{r+3}], v7, s[12:15], s{50 + ee} offen offset:{k * 64}")
    stamp(1)
    srd(16, 4096 * 1152); srd(20, 512 * 8192); srd(24, 576 * 9216)
    e(f"""v_bfe_u32 v16, v1, 2, 3                 ; 4(g&1)+r
          v_lshlrev_b32 v16, 5, v16
          v_and_b32 v17, 3, v1
          v_lshl_add_u32 v16, v17, 3, v16
          v_lshl_add_u32 v16, v6, 8, v16
          v_lshl_add_u32 v{vTR}, v2, 11, v16""")
    for ct in range(1, 8): e(f"v_xor_b32 v{vTR + ct}, {32 * ct}, v{vTR}")
    e(f"""s_lshl_b32 s50, {sW}, 6
          v_xor_b32 v16, s50, v{vTR}
          v_xor_b32 v17, s50, v{vTR+1}
          v_add_u32 v18, 0x10000, v16
          v_add_u32 v19, 0x10000, v17
          v_add_u32 v20, 0x20000, v16
          v_add_u32 v21, 0x20000, v17
          v_and_b32 v22, 1, v1
          v_mul_u32_u24 v23, 2304, v22
          v_lshl_add_u32 v23, v2, 3, v23
          s_lshl_b32 s50, s48, 6
          s_add_u32 s50, s50, {XN}
          v_add_u32 v23, s50, v23
          v_lshlrev_b32 v24, 8, v22
          v_lshl_add_u32 v25, v2, 4, v24
          v_add_u32 v25, {QQ}, v25
          v_lshl_add_u32 v24, v2, 3, v24
          s_lshl_b32 s50, {sW}, 6
          s_add_u32 s50, s50, {QQ}
          v_add_u32 v24, s50, v24
          s_waitcnt lgkmcnt(0)""")
    make_tag()
    e(f"""v_lshlrev_b32 v26, 16, v22
          v_lshl_add_u32 v26, v2, 4, v26
          s_lshr_b32 s50, s38, 4
          s_lshl2_add_u32 s50, s50, s39
          s_lshl_b32 s50, s50, 13
          s_lshl_b32 s51, {sW}, 11
          s_add_u32 s50, s50, s51
          s_and_b32 s51, s38, 15
          s_lshl_b32 s51, s51, 6
          s_add_u32 s50, s50, s51
          s_add_u32 s50, s50, {WS_Q}
          v_add_u32 v26, s50, v26
          v_mov_b32 v80, s36
          v_mov_b32 v81, s37
          v_mov_b32 v86, s36
          v_mov_b32 v87, s37""")
    aXN, aWQ = 0, 72
    phases = [(0, 12, 20), (12, 15, 14), (15, 18, 8)]
    for pi, (s0, s1, vm) in enumerate(phases):
        e(f"s_waitcnt vmcnt({vm})\ns_barrier")
        if pi == 0:
            for sg in range(18):
                e(f"ds_read2_b64 a[{aXN+4*sg}:{aXN+4*sg+3}], v23 offset0:{8*sg} offset1:{8*sg+4}")
        for sg in range(s0, s1):
            for c in range(2):
                for u in range(2):
                    r = aWQ + sg * 8 + c * 4 + u * 2
                    e(f"ds_read_b64_tr_b16 a[{r}:{r+1}], v{16 + 2 * (sg >> 3) + c} offset:{(sg & 7) * 8192 + u * 1024}")
            if sg - s0 >= 2:
                t = sg - 2
                e("s_waitcnt lgkmcnt(8)")
                for c in range(2):
                    r = aWQ + t * 8 + c * 4
                    e(f"v_mfma_f32_16x16x32_bf16 v[{64+4*c}:{67+4*c}], a[{r}:{r+3}], a[{aXN+4*t}:{aXN+4*t+3}], " + ("0" if t == 0 else f"v[{64+4*c}:{67+4*c}]"))
        for t, lg in ((s1 - 2, 4), (s1 - 1, 0)):
            e(f"s_waitcnt lgkmcnt({lg})")
            for c in range(2):
                r = aWQ + t * 8 + c * 4
                e(f"v_mfma_f32_16x16x32_bf16 v[{64+4*c}:{67+4*c}], a[{r}:{r+3}], a[{aXN+4*t}:{aXN+4*t+3}], v[{64+4*c}:{67+4*c}]")
    stamp(2)
    e(f"""v_cvt_pk_bf16_f32 v72, v64, v65
          v_cvt_pk_bf16_f32 v73, v66, v67
          v_cvt_pk_bf16_f32 v74, v68, v69
          v_cvt_pk_bf16_f32 v75, v70, v71
          ds_write2_b64 v24, v[72:73], v[74:75] offset1:4
          s_waitcnt lgkmcnt(0)
          s_barrier""")
    for k in range(4): e(f"ds_read_b128 v[{88+4*k}:{91+4*k}], v25 offset:{64 * k}")
    e("s_waitcnt vmcnt(0)")
    for k in range(4):
        e(f"s_waitcnt lgkmcnt({3 - k})")
        for ee in range(2):
            r = vUK + (ee * 4 + k) * 4
            e(f"v_mfma_f32_16x16x32_bf16 v[{64+4*ee}:{67+4*ee}], v[{r}:{r+3}], v[{88+4*k}:{91+4*k}], " + ("0" if k == 0 else f"v[{64+4*ee}:{67+4*ee}]"))
    e(f"s_mov_b32 s50, {f32(128 ** -0.5 * math.log2(math.e))}")
    for i in range(8): e(f"v_mul_f32 v{64+i}, s50, v{64+i}")
    for i in range(4): e(f"v_cvt_pk_bf16_f32 v{82+i}, v{64+2*i}, v{65+2*i}")
    e(f"""s_mov_b32 exec_lo, 0x00030003
          s_mov_b32 exec_hi, 0x00030003
          buffer_store_dwordx4 v[80:83], v26, s[4:7], 0 offen sc1
          buffer_store_dwordx4 v[84:87], v26, s[4:7], 0 offen offset:1024 sc1
          s_mov_b64 exec, -1""")
    stamp(3)
    vL, vW1, vT, vT2, vT16 = 32, 42, 52, 56, 60
    d9_addrs(vL, vW1, 9216 - 1152, 0, 16)
    e(f"""s_mul_i32 s44, {sU}, {36 * 9216}
          s_mul_i32 s50, {sX}, 1152
          s_add_u32 s44, s44, s50
          s_cmp_lg_u32 {sW}, 0
          s_cbranch_scc1 L_qv_nx1
          s_add_u32 s45, s44, {4 * 73728}
          s_mov_b32 s47, {R3 + 4 * 9216}""")
    dma9(vW1, 24, "s45", "s47", 5)
    e(f"""L_qv_nx1:
          s_mul_i32 s50, {sW}, 73728
          s_add_u32 s44, s44, s50
          s_mul_i32 s49, {sW}, 9216
          s_add_u32 s47, s49, {R3}""")
    dma9(vW1, 24, "s44", "s47")
    e(f"s_mul_i32 s53, s38, 147456\ns_add_u32 s53, s53, s49")
    def wo_dma(sg, reg):
        e(f"s_xor_b32 s50, s39, {sg}\ns_mul_i32 s50, s50, 36864\ns_add_u32 s44, s53, s50\ns_add_u32 s47, s49, {reg}")
        dma9(vL, 16, "s44", "s47")
    wo_dma(0, R0)
    e(f"s_lshl_b32 s44, s39, 20\ns_add_u32 s47, s46, {R2}")
    for k in range(4):
        e(f"""s_mov_b32 m0, s47
              s_add_u32 s47, s47, 8192
              buffer_load_dwordx4 v{vDQ}, s[20:23], s44 offen {nt} lds
              buffer_load_dwordx4 v{vDQ+1}, s[20:23], s44 offen offset:1024 {nt} lds
              s_add_u32 s44, s44, 0x40000""")
    t9_addrs(vT, vT16, R3, 16)
    for m in range(4): e(f"v_add_u32 v{vT2+m}, {R2}, v{vT+m}")
    for ct in range(8): e(f"v_add_u32 v{vTR+ct}, {R2}, v{vTR+ct}")
    e(f"""v_bfe_u32 v16, v1, 2, 1
          v_mul_u32_u24 v16, 1152, v16
          v_lshl_add_u32 v16, v2, 3, v16
          s_mul_i32 s50, {sU}, 72
          s_add_u32 s50, s50, {YN}
          v_add_u32 v16, s50, v16
          v_mul_u32_u24 v17, 6144, v6
          v_lshl_add_u32 v17, v2, 10, v17
          v_and_b32 v18, 3, v1
          v_lshl_add_u32 v17, v18, 4, v17
          s_lshl2_add_u32 s50, {sX}, {sW}
          s_mul_i32 s50, s50, {4 * 6144}
          s_lshl_b32 s51, {sU}, 6
          s_add_u32 s50, s50, s51
          s_add_u32 s50, s50, {WS_HM}
          v_add_u32 v17, s50, v17""")
    wo_dma(1, R1)
    e("s_waitcnt vmcnt(26)\ns_barrier")
    gemv36(vT2, R3 - R2, vT16, 16, 64, 120, 160, 17, 2048)
    stamp(4)
    def wo_frag(sg, t):
        i = sg * 9 + t
        return ("a", 128 + 4 * i) if i < 32 else ("v", 240 + 4 * (i - 32))
    def wo_read(sg):
        base, off = (vT, sg * 36864) if sg < 2 else (vT2, (sg - 2) * 36864)
        for t in range(9):
            f, r = wo_frag(sg, t)
            for u in range(2):
                e(f"ds_read_b64_tr_b16 {f}[{r+2*u}:{r+2*u+1}], v{base + (t & 3)} offset:{off + u * 18432 + (t >> 2) * 128}")
    e("s_waitcnt vmcnt(12)\ns_barrier")
    for k in range(4):
        for ct in range(8):
            for u in range(2):
                r = (k * 8 + ct) * 4 + 2 * u
                e(f"ds_read_b64_tr_b16 a[{r}:{r+1}], v{vTR + ct} offset:{k * 8192 + u * 1024}")
    e("s_waitcnt lgkmcnt(0)\ns_barrier")
    wo_dma(2, R2); wo_dma(3, R3)
    wo_read(0)
    vH3, vH3b, vBP, vCW, vCR, vS5 = 16, 17, 18, 19, 20, 21
    e(f"""v_and_b32 v22, 15, v1
          v_lshlrev_b32 v23, 6, v22
          v_lshl_add_u32 v23, v2, 4, v23
          s_lshl2_add_u32 s50, s38, s39
          s_mul_i32 s50, s50, 24576
          s_add_u32 s50, s50, {WS_H3}
          s_lshl_b32 s51, {sW}, 10
          s_add_u32 s52, s50, s51
          v_add_u32 v{vH3}, s52, v23
          s_xor_b32 s51, s51, 1024
          s_add_u32 s52, s50, s51
          s_add_u32 s52, s52, {5 * 4096}
          v_add_u32 v{vH3b}, s52, v23
          v_lshlrev_b32 v{vBP}, 4, v2
          v_xor_b32 v23, s39, v2
          v_lshlrev_b32 v23, 6, v23
          v_lshl_add_u32 v23, v22, 1, v23
          s_lshl_b32 s50, {sW}, 8
          s_add_u32 s50, s50, {CX}
          v_add_u32 v{vCW}, s50, v23
          v_bfe_u32 v23, v1, 2, 1
          v_and_b32 v22, 1, v1
          v_lshl_add_u32 v23, v23, 1, v22
          v_lshlrev_b32 v23, 8, v23
          v_lshl_add_u32 v23, v2, 3, v23
          v_add_u32 v{vCR}, {CX}, v23""")
    h5_store_addr(vS5, WS_H5S, 22)
    e("s_waitcnt vmcnt(18)\ns_barrier"); wo_read(1)
    e("s_waitcnt vmcnt(9)\ns_barrier"); wo_read(2)
    e("s_waitcnt vmcnt(0)\ns_barrier"); wo_read(3)
    stamp(5)
    G = 64
    e(f"s_mov_b32 s54, 0\nL_h3:")
    for i in range(6):
        e(f"s_mov_b32 s50, {i * 4096}\nbuffer_load_dwordx4 v[{G+4*i}:{G+4*i+3}], v{vH3}, s[4:7], s50 offen sc1")
    e(f"""buffer_load_dwordx4 v[{G+24}:{G+27}], v{vH3b}, s[4:7], 0 offen sc1
          s_add_u32 s54, s54, 1
          s_cmp_gt_u32 s54, {SPIN}
          s_cbranch_scc1 L_h3_done
          s_waitcnt vmcnt(0)
          v_bitop3_b32 v22, v{G+3}, v{G+7}, {sT} bitop3:0x7e
          v_bitop3_b32 v23, v{G+11}, v{G+15}, {sT} bitop3:0x7e
          v_bitop3_b32 v24, v{G+19}, v{G+23}, {sT} bitop3:0x7e
          v_bitop3_b32 v25, v{G+22}, v{G+26}, s37 bitop3:0x7e
          v_xor_b32 v26, {sT}, v{G+27}
          v_or3_b32 v22, v22, v23, v24
          v_or3_b32 v22, v22, v25, v26
          v_cmp_ne_u32 vcc, 0, v22
          s_and_b64 exec, exec, vcc
          s_cbranch_execnz L_h3
          L_h3_done:
          s_mov_b64 exec, -1
          s_waitcnt vmcnt(0) lgkmcnt(0)""")
    stamp(6)
    e(f"""v_mov_b32 v{G+3}, v{G+16}
          v_mov_b32 v{G+7}, v{G+17}
          v_mov_b32 v{G+11}, v{G+18}
          v_mov_b32 v{G+15}, v{G+20}""")
    D2, AC = 96, 128
    side = []
    side.append(f"v_max_f32 v22, v{G+21}, v{G+25}")
    for s_ in (8, 4, 2, 1): side.append(f"v_max_f32_dpp v22, v22, v22 row_ror:{s_} row_mask:0xf bank_mask:0xf")
    side += [f"v_sub_f32 v23, v{G+21}, v22\nv_sub_f32 v24, v{G+25}, v22", "v_exp_f32 v23, v23", "v_exp_f32 v24, v24", "v_add_f32 v24, v23, v24"]
    for s_ in (8, 4, 2, 1): side.append(f"v_add_f32_dpp v24, v24, v24 row_ror:{s_} row_mask:0xf bank_mask:0xf")
    side += ["v_rcp_f32 v24, v24", "v_mul_f32 v23, v23, v24"]
    side += [f"ds_bpermute_b32 v{28+r}, v{vBP}, v23 offset:{4 * r}" for r in range(4)]
    def fma_tile(ct):
        return [f"v_mul_f32 v{AC+ct}, v28, v{D2+4*ct}\nv_fmac_f32 v{AC+ct}, v29, v{D2+4*ct+1}", f"v_fmac_f32 v{AC+ct}, v30, v{D2+4*ct+2}\nv_fmac_f32 v{AC+ct}, v31, v{D2+4*ct+3}"]
    n = 0
    for ct in range(8):
        for k in range(4):
            r = (k * 8 + ct) * 4
            e(f"v_mfma_f32_16x16x32_bf16 v[{D2+4*ct}:{D2+4*ct+3}], v[{G+4*k}:{G+4*k+3}], a[{r}:{r+3}], " + ("0" if k == 0 else f"v[{D2+4*ct}:{D2+4*ct+3}]"))
            n += 1
            if side: e(side.pop(0))
            if n == 22:
                side = ["s_waitcnt lgkmcnt(0)"]
                for c2 in range(4): side += fma_tile(c2)
    assert not side, side
    for c2 in range(4, 8):
        for s_ in fma_tile(c2): e(s_)
    for k in range(4): e(f"v_permlane32_swap_b32 v{AC+k}, v{AC+k+4}")
    for k in range(4): e(f"v_add_f32 v{AC+k}, v{AC+k}, v{AC+k+4}")
    for k in range(2): e(f"v_permlane16_swap_b32 v{AC+k}, v{AC+k+2}")
    for k in range(2): e(f"v_add_f32 v{AC+k}, v{AC+k}, v{AC+k+2}")
    e(f"""v_cvt_pk_bf16_f32 v{AC}, v{AC}, v{AC+1}
          ds_write_b16 v{vCW}, v{AC}
          ds_write_b16_d16_hi v{vCW}, v{AC} offset:32
          s_waitcnt lgkmcnt(0)
          s_barrier""")
    CA, D3, GR = 64, 140, 96
    for sg in range(4): e(f"ds_read2_b64 v[{CA+4*sg}:{CA+4*sg+3}], v{vCR} offset0:{8*sg} offset1:{8*sg+4}")
    for a in range(3): e(f"v_mov_b32 v{GR+4*a+3}, {sT}")
    e("s_waitcnt lgkmcnt(0)")
    def emit_out(a):
        for t in range(3):
            r = D3 + 4 * (3 * a + t)
            e(f"v_add_f32 v{GR+4*a+t}, v{r}, v{r+1}")
        e(f"s_mov_b32 s50, {a * 65536}\ns_mov_b32 exec_hi, 0\nbuffer_store_dwordx4 v[{GR+4*a}:{GR+4*a+3}], v{vS5}, s[4:7], s50 offen sc1\ns_mov_b32 exec_hi, -1")
    for t in range(9):
        for sg in range(4):
            f, r = wo_frag(sg, t)
            e(f"v_mfma_f32_16x16x32_bf16 v[{D3+4*t}:{D3+4*t+3}], v[{CA+4*sg}:{CA+4*sg+3}], {f}[{r}:{r+3}], " + ("0" if sg == 0 else f"v[{D3+4*t}:{D3+4*t+3}]"))
        if t in (4, 7): emit_out((t - 2) // 3)
    emit_out(2)
    stamp(7)
    e("s_branch L_fin")

    e("L_kv2:")
    stamp(1)
    vQK, vPV = 24, 28
    vQL, vXW, vMW, vMR, vRS = 44, 45, 46, 47, 48
    QF, QS, O, S, P, REC = 64, 128, 160, 192, 200, 128
    vM, vLs = 50, 51
    e(f"""s_load_dwordx2 s[16:17], s[0:1], 72
          s_load_dwordx2 s[20:21], s[0:1], 64
          s_load_dwordx2 s[24:25], s[0:1], 80
          s_load_dwordx2 s[40:41], s[0:1], 88
          v_lshrrev_b32 v2, 4, v1                 ; g
          v_and_b32 v4, 15, v1                    ; rho
          v_lshrrev_b32 v6, 3, v4
          v_lshlrev_b32 v7, 2, v6
          v_xor_b32 v7, v7, v4
          v_and_b32 v7, 7, v7
          v_lshl_or_b32 v7, v7, 1, v6             ; f(rho)
          v_xor_b32 v7, v7, v2
          v_lshlrev_b32 v7, 4, v7
          v_lshl_add_u32 v7, v4, 10, v7
          v_add_u32 v{vQK}, s46, v7""")
    for m in range(1, 4): e(f"v_xor_b32 v{vQK+m}, {64 * m}, v{vQK}")
    e(f"""v_lshrrev_b32 v52, 2, v1                ; key = 4g+r
          v_lshrrev_b32 v6, 5, v1
          v_lshlrev_b32 v7, 2, v6
          v_xor_b32 v7, v7, v52
          v_and_b32 v7, 7, v7
          v_lshl_or_b32 v7, v7, 1, v6             ; f(key)
          v_bfe_u32 v6, v1, 1, 1
          v_xor_b32 v7, v7, v6
          v_lshlrev_b32 v7, 4, v7
          v_and_b32 v6, 1, v1
          v_lshl_add_u32 v7, v6, 3, v7
          v_lshl_add_u32 v7, v52, 10, v7
          s_lshl_b32 s50, {sW}, 8
          v_add_u32 v{vPV}, s50, v7""")
    for ct in range(1, 8): e(f"v_xor_b32 v{vPV+ct}, {32 * ct}, v{vPV}")
    for ct in range(8): e(f"v_add_u32 v{vPV+8+ct}, 0x10000, v{vPV+ct}")
    e(f"""v_lshlrev_b32 v6, 6, v4
          v_lshl_add_u32 v6, v2, 4, v6            ; rho*64 + g*16
          s_lshr_b32 s50, s48, 5
          s_lshl1_add_u32 s50, s50, s49
          s_lshl2_add_u32 s50, s50, {sW}
          s_lshl_b32 s50, s50, 13
          s_add_u32 s50, s50, {WS_Q}
          v_add_u32 v{vQL}, s50, v6
          v_add_u32 v{vXW}, {QX}, v3
          v_lshlrev_b32 v6, 4, v4
          v_add_u32 v{vMR}, {MX}, v6
          s_lshl_b32 s50, {sW}, 2
          v_add_u32 v{vMW}, s50, v{vMR}
          v_mul_u32_u24 v6, {4 * 24576}, v4
          v_lshl_add_u32 v6, v2, 4, v6
          s_lshl_b32 s50, s49, 6
          s_add_u32 s50, s50, {sW}
          s_mul_i32 s50, s50, 24576
          s_lshl_b32 s51, s48, 6
          s_add_u32 s50, s50, s51
          s_add_u32 s50, s50, {WS_H3}
          v_add_u32 v{vRS}, s50, v6
          v_mov_b32 v{vM}, 0xff800000
          v_mov_b32 v{vLs}, 0
          s_lshl_b32 s55, {sW}, 12
          s_lshl_b32 s56, {sW}, 10
          v_add_u32 v53, s55, v{vXW}
          v_add_u32 v54, s56, v{vXW}""")
    for i in range(32): e(f"v_mov_b32 v{O+i}, 0")
    srd(16, 4608 * 1152); srd(20, 9216); srd(24, 1152); srd(40, 2304)
    e("s_waitcnt lgkmcnt(0)")
    make_tag()
    def frags(sp):
        for k in range(16):
            r = (sp * 16 + k) * 4
            e(f"ds_read_b128 a[{r}:{r+3}], v{vQK + (k & 3)} offset:{sp * 16384 + (k >> 2) * 256}")
        for k in range(4):
            for ct in range(8):
                r = 128 + (k * 8 + ct) * 4 + 2 * sp
                e(f"ds_read_b64_tr_b16 a[{r}:{r+1}], v{vPV + ct + 8 * (k >> 1)} offset:{(k & 1) * 32768 + sp * 16384}")
    def qloads():
        for i in range(8):
            if i == 4: e("s_movk_i32 s50, 4096")
            e(f"buffer_load_dwordx4 v[{QS+4*i}:{QS+4*i+3}], v{vQL}, s[4:7], {'s50' if i >= 4 else '0'} offen offset:{(i & 3) * 1024} sc1")
    e("s_mov_b32 s57, 0\nL_att:\ns_waitcnt vmcnt(16)\ns_barrier")
    frags(0)
    e("s_cmp_lg_u32 s57, 0\ns_cbranch_scc1 L_att_b1\ns_waitcnt lgkmcnt(0)\ns_barrier")
    stamp(2)
    qloads()
    slot_dma("s45", "s_mov_b32 m0, s46")
    e("s_waitcnt vmcnt(24)\ns_branch L_att_b2\nL_att_b1:\ns_waitcnt vmcnt(0)\nL_att_b2:\ns_barrier")
    frags(1)
    e("s_cmp_lg_u32 s57, 0\ns_cbranch_scc1 L_att_go\ns_waitcnt lgkmcnt(0)\ns_barrier")
    stamp(3)
    e("s_add_u32 s45, s45, 0x10000")
    slot_dma("s45", "s_add_u32 m0, s46, 0x4000")
    e("s_mov_b32 s54, 0\ns_waitcnt vmcnt(32)\nL_q_chk:")
    for t in range(4):
        r = QS + 8 * t
        e(f"v_cmp_ne_u64 vcc, {TP}, v[{r}:{r+1}]" if t == 0 else f"v_cmp_ne_u64 s[50:51], {TP}, v[{r}:{r+1}]\ns_or_b64 vcc, vcc, s[50:51]")
        e(f"v_cmp_ne_u64 s[52:53], {TP}, v[{r+6}:{r+7}]\ns_or_b64 vcc, vcc, s[52:53]")
    e(f"""s_and_b64 exec, exec, vcc
          s_cbranch_execz L_q_ok
          s_add_u32 s54, s54, 1
          s_cmp_gt_u32 s54, {SPIN}
          s_cbranch_scc1 L_q_ok""")
    qloads()
    e("s_waitcnt vmcnt(0)\ns_branch L_q_chk\nL_q_ok:\ns_mov_b64 exec, -1")
    for t in range(4): e(f"ds_write_b128 v53, v[{QS+8*t+2}:{QS+8*t+5}] offset:{1024 * t}")
    e("s_waitcnt lgkmcnt(0)\ns_barrier")
    for k in range(16): e(f"ds_read_b128 v[{QF+4*k}:{QF+4*k+3}], v{vXW} offset:{1024 * k}")
    stamp(4)
    e("L_att_go:\ns_waitcnt lgkmcnt(0)")
    for k in range(16):
        for sp in range(2):
            r = (sp * 16 + k) * 4
            e(f"v_mfma_f32_16x16x32_bf16 v[{S+4*sp}:{S+4*sp+3}], a[{r}:{r+3}], v[{QF+4*k}:{QF+4*k+3}], " + ("0" if k == 0 else f"v[{S+4*sp}:{S+4*sp+3}]"))
    e(f"""v_max3_f32 v55, v{S}, v{S+1}, v{S+2}
          v_max3_f32 v56, v{S+4}, v{S+5}, v{S+6}
          v_max3_f32 v55, v55, v{S+3}, v{S+7}
          v_max_f32 v55, v55, v56
          v_mov_b32 v56, v55
          v_permlane32_swap_b32 v55, v56
          v_max_f32 v55, v55, v56
          v_mov_b32 v56, v55
          v_permlane16_swap_b32 v55, v56
          v_max_f32 v55, v55, v56
          ds_write_b32 v{vMW}, v55
          s_waitcnt lgkmcnt(0)
          s_barrier
          ds_read_b128 v[56:59], v{vMR}
          s_waitcnt lgkmcnt(0)
          v_max3_f32 v55, v56, v57, v58
          v_max3_f32 v55, v55, v59, v{vM}
          v_sub_f32 v60, v{vM}, v55
          v_mov_b32 v{vM}, v55""")
    for i in range(8): e(f"v_sub_f32 v{S+i}, v{S+i}, v55")
    e("v_exp_f32 v60, v60")
    for i in range(8): e(f"v_exp_f32 v{S+i}, v{S+i}")
    for i in range(4): e(f"v_cvt_pk_bf16_f32 v{56+i}, v{S+2*i}, v{S+2*i+1}")
    e(f"ds_write_b128 v54, v[56:59] offset:{PX - QX}")
    e(f"""v_add_f32 v{S}, v{S}, v{S+1}
          v_add_f32 v{S+2}, v{S+2}, v{S+3}
          v_add_f32 v{S+4}, v{S+4}, v{S+5}
          v_add_f32 v{S+6}, v{S+6}, v{S+7}
          v_add_f32 v{S}, v{S}, v{S+2}
          v_add_f32 v{S+4}, v{S+4}, v{S+6}
          v_add_f32 v{S}, v{S}, v{S+4}
          v_fma_f32 v{vLs}, v{vLs}, v60, v{S}
          v_mov_b32 v55, v{vLs}
          v_mov_b32 v61, v{vLs}
          v_permlane32_swap_b32 v55, v61
          v_add_f32 v55, v55, v61
          v_mov_b32 v61, v55
          v_permlane16_swap_b32 v55, v61
          v_add_f32 v55, v55, v61
          ds_write_b32 v{vMW}, v55 offset:{LX - MX}
          s_waitcnt lgkmcnt(0)
          s_barrier""")
    for k in range(4): e(f"ds_read_b128 v[{P+4*k}:{P+4*k+3}], v{vXW} offset:{PX - QX + 1024 * k}")
    e(f"ds_read_b128 v[56:59], v{vMR} offset:{LX - MX}")
    for i in range(32): e(f"v_mul_f32 v{O+i}, v60, v{O+i}")
    e("s_waitcnt lgkmcnt(0)")
    for ct in range(8):
        for k in range(4):
            r = 128 + (k * 8 + ct) * 4
            e(f"v_mfma_f32_16x16x32_bf16 v[{O+4*ct}:{O+4*ct+3}], a[{r}:{r+3}], v[{P+4*k}:{P+4*k+3}], v[{O+4*ct}:{O+4*ct+3}]")
    e("s_add_u32 s57, s57, 1\ns_cmp_lt_u32 s57, 2\ns_cbranch_scc1 L_att")
    stamp(5)
    e(f"""v_add_f32 v56, v56, v57
          v_add_f32 v58, v58, v59
          v_add_f32 v56, v56, v58
          v_rcp_f32 v57, v56
          v_log_f32 v56, v56""")
    for i in range(6): e(f"v_mov_b32 v{REC+4*i+3}, {sT}")
    e(f"v_mov_b32 v{REC+22}, s37\nv_add_f32 v{REC+21}, v{vM}, v56")
    for t in range(4):
        for i in range(8): e(f"v_mul_f32 v{O+8*t+i}, v57, v{O+8*t+i}")
        for d in range(4):
            dst = REC + 4 * t + d if d < 3 else (REC + 16 + t if t < 3 else REC + 20)
            e(f"v_cvt_pk_bf16_f32 v{dst}, v{O+8*t+2*d}, v{O+8*t+2*d+1}")
        e(f"s_mov_b32 s50, {t * 4096}\nbuffer_store_dwordx4 v[{REC+4*t}:{REC+4*t+3}], v{vRS}, s[4:7], s50 offen sc1")
    for i in (4, 5):
        e(f"s_mov_b32 s50, {i * 4096}\nbuffer_store_dwordx4 v[{REC+4*i}:{REC+4*i+3}], v{vRS}, s[4:7], s50 offen sc1")
    stamp(6)
    vW2, vTk, vT16k = 8, 18, 22
    d9_addrs(None, vW2, 18432 - 4608, 2, 56)
    e(f"""s_lshr_b32 s50, {sU}, 2
          s_mul_i32 s50, s50, 144
          s_mul_i32 s51, {sX}, 576
          s_add_u32 s50, s50, s51
          s_lshl2_add_u32 s58, s39, s50
          s_mul_i32 s44, s58, 1152
          s_cmp_lg_u32 {sW}, 3
          s_cbranch_scc1 L_kv_nx1
          s_add_u32 s45, s44, {4 * 36864}
          s_mov_b32 s47, {4 * 9216}""")
    dma9(vW2, 16, "s45", "s47", 5)
    e(f"""s_branch L_kv_nx2
          L_kv_nx1:
          s_lshl4_add_u32 s50, {sX}, {sU}
          s_mul_i32 s50, s50, 6144
          s_lshl_b32 s51, {sW}, 11
          s_add_u32 s50, s50, s51
          s_add_u32 s59, s50, {WS_HM}
          v_and_b32 v56, 3, v1
          v_lshl_add_u32 v57, v2, 4, v56
          s_mul_i32 s50, {sW}, 48
          s_add_u32 s50, s50, s58
          v_add_lshl_u32 v57, v57, s50, 1
          buffer_load_ushort v58, v57, s[20:23], 0 offen
          s_mov_b32 s54, 0
          L_hm:
          buffer_load_dwordx4 v[64:67], v3, s[4:7], s59 offen sc1
          buffer_load_dwordx4 v[68:71], v3, s[4:7], s59 offen offset:1024 sc1
          s_add_u32 s54, s54, 1
          s_cmp_gt_u32 s54, {SPIN}
          s_cbranch_scc1 L_hm_done
          s_waitcnt vmcnt(0)
          v_bitop3_b32 v59, v67, v71, {sT} bitop3:0x7e
          v_cmp_ne_u32 vcc, 0, v59
          s_cbranch_vccnz L_hm
          L_hm_done:
          L_kv_nx2:
          s_mul_i32 s50, {sW}, 36864
          s_add_u32 s44, s44, s50
          s_mul_i32 s47, {sW}, 9216""")
    dma9(vW2, 16, "s44", "s47")
    e(f"s_cmp_eq_u32 {sW}, 3\ns_cbranch_scc1 L_kv_nx3")
    red16(64, 0); red16(68, 0)
    c1 = -2 * math.sqrt(2 / math.pi) * math.log2(math.e)
    e(f"""v_and_b32 v59, 4, v1
          v_cmp_ne_u32 vcc, 0, v59
          v_lshlrev_b32 v58, 16, v58
          v_cndmask_b32 v64, v64, v68, vcc""")
    rbf("v64", "v64")
    e("v_add_f32 v64, v64, v58")
    rbf("v64", "v64")
    e(f"""v_mul_f32 v65, v64, v64
          v_mov_b32 v66, {f32(c1)}
          v_fmac_f32 v66, {f32(c1 * 0.044715)}, v65
          v_mul_f32 v65, v66, v64
          v_exp_f32 v65, v65
          v_add_f32 v65, 1.0, v65
          v_rcp_f32 v65, v65
          v_mul_f32 v64, v64, v65
          v_cvt_pk_bf16_f32 v64, v64, v64
          v_mul_u32_u24 v59, 32, v59              ; b*128
          v_lshl_add_u32 v59, v2, 3, v59
          v_lshl_add_u32 v59, v56, 1, v59
          s_mul_i32 s50, {sW}, 24
          s_add_u32 s50, s50, {HX}
          v_add_u32 v59, s50, v59
          s_mov_b32 exec_hi, 0xffff
          ds_write_b16 v59, v64
          s_mov_b32 exec_hi, -1
          L_kv_nx3:""")
    t9_addrs(vTk, vT16k, 0, 56)
    h5_store_addr(26, WS_H5M, 56)
    e(f"""v_bfe_u32 v27, v1, 2, 1
          v_lshlrev_b32 v27, 7, v27
          v_lshl_add_u32 v27, v2, 3, v27
          v_add_u32 v27, {HX}, v27
          s_waitcnt vmcnt(0) lgkmcnt(0)
          s_barrier""")
    gemv36(vTk, 0, vT16k, 27, 64, 120, 160, 26, 65536)
    stamp(7)
    e(f"""s_cmp_ge_u32 {sU}, 12
          s_cbranch_scc1 L_fin
          s_mul_i32 s44, {sX}, 12
          s_add_u32 s44, s44, {sU}                ; r
          s_lshr_b32 s50, s44, 3                  ; 3w+a
          s_mul_i32 s50, s50, 48
          s_and_b32 s51, s44, 3
          s_lshl2_add_u32 s50, s51, s50
          v_and_b32 v56, 3, v1
          v_lshl_add_u32 v57, v2, 4, v56
          v_add_lshl_u32 v57, v57, s50, 1
          s_bfe_u32 s51, s44, 0x10002
          s_mul_i32 s48, s51, 1152
          buffer_load_ushort v58, v57, s[24:27], 0 offen
          buffer_load_ushort v59, v57, s[28:31], s48 offen
          v_lshlrev_b32 v60, 4, v0
          s_lshl_b32 s45, s44, 13
          s_add_u32 s46, s45, {WS_H5M}
          s_add_u32 s47, s46, 4096
          v_lshl_add_u32 v61, v2, 2, v56
          v_lshlrev_b32 v61, 4, v61
          v_add_u32 v61, {FX}, v61
          s_lshl_b32 s50, {sW}, 2
          v_add_u32 v62, s50, v61
          s_mov_b32 s57, 0
          L_f_loop:
          s_mov_b32 s54, 0
          L_f_poll:
          buffer_load_dwordx4 v[64:67], v60, s[4:7], s46 offen sc1
          buffer_load_dwordx4 v[68:71], v60, s[4:7], s47 offen sc1
          s_add_u32 s54, s54, 1
          s_cmp_gt_u32 s54, {SPIN}
          s_cbranch_scc1 L_f_done
          s_waitcnt vmcnt(0)
          v_bitop3_b32 v63, v67, v71, {sT} bitop3:0x7e
          v_cmp_ne_u32 vcc, 0, v63
          s_and_b64 exec, exec, vcc
          s_cbranch_execnz L_f_poll
          L_f_done:
          s_mov_b64 exec, -1
          s_waitcnt vmcnt(0)
          v_add_f32 v64, v64, v68
          v_add_f32 v65, v65, v69
          v_add_f32 v66, v66, v70""")
    red16(64, 0)
    e(f"""ds_write_b32 v62, v64
          s_waitcnt lgkmcnt(0)
          s_barrier
          ds_read_b128 v[64:67], v61
          s_waitcnt lgkmcnt(0)
          v_add_f32 v64, v64, v65
          v_add_f32 v66, v66, v67
          v_add_f32 v64, v64, v66""")
    rbf("v64", "v64")
    e(f"""s_cmp_lg_u32 s57, 0
          s_cbranch_scc1 L_f_out
          v_lshlrev_b32 v58, 16, v58
          v_add_f32 v64, v64, v58""")
    rbf("v64", "v64")
    e(f"""v_mul_f32 v65, {f32(-math.log2(math.e))}, v64
          v_exp_f32 v65, v65
          v_add_f32 v65, 1.0, v65
          v_rcp_f32 v65, v65
          v_mul_f32 v58, v64, v65""")
    rbf("v58", "v58")
    e(f"""v_lshlrev_b32 v59, 16, v59
          v_add_u32 v61, 256, v61
          v_add_u32 v62, 256, v62
          s_add_u32 s46, s45, {WS_H5S}
          s_add_u32 s47, s46, 4096
          s_mov_b32 s57, 1""")
    stamp(8)
    e(f"""s_branch L_f_loop
          L_f_out:
          v_mul_f32 v64, v64, v58""")
    rbf("v64", "v64")
    e(f"""v_add_f32 v64, v59, v64
          v_cvt_pk_bf16_f32 v64, v64, v64
          s_cmp_lg_u32 {sW}, 0
          s_cbranch_scc1 L_fin
          s_mov_b32 exec_lo, 0x000f000f
          s_mov_b32 exec_hi, 0x0000000f
          buffer_store_short v64, v57, s[40:43], s48 offen
          s_mov_b64 exec, -1
          s_cmp_lg_u32 s44, 0
          s_cbranch_scc1 L_fin
          v_mov_b32 v65, {sT}
          v_mov_b32 v66, {WS_EPOCH}
          s_mov_b64 exec, 1
          buffer_store_dword v65, v66, s[4:7], 0 offen
          s_mov_b64 exec, -1""")
    e("L_fin:")
    if stamps:
        stamp(9)
        e(f"""s_cmp_lg_u32 {sW}, 0
              s_cbranch_scc1 L_end
              s_waitcnt lgkmcnt(0)""")
        for k in range(10): e(f"v_mov_b32 v{64+k}, s{64 + 2 * k}")
        e(f"""v_mov_b32 v74, s54
              v_mov_b32 v75, 0
              s_lshl_b32 s50, s2, 6
              s_add_u32 s50, s50, {STAMP_OFF}
              v_mov_b32 v63, 0
              s_mov_b64 exec, 1
              buffer_store_dwordx4 v[64:67], v63, s[4:7], s50 offen
              buffer_store_dwordx4 v[68:71], v63, s[4:7], s50 offen offset:16
              buffer_store_dwordx4 v[72:75], v63, s[4:7], s50 offen offset:32""")
    e("L_end:\ns_endpgm")
    head = f"""; Persistent single-launch kernel: absorbed-MLA decode attention + channel MLP (generated by gen/gen1.py)
; @launch grid=(256,1,1) block=(256,1,1) lds=163840
.amdgcn_target "amdgcn-amd-amdhsa--gfx950"
.text
.globl {K}
.p2align 8
.type {K},@function
"""
    tail = f""".section .rodata,"a"
.p2align 6
.amdhsa_kernel {K}
  .amdhsa_next_free_vgpr 512
  .amdhsa_next_free_sgpr 96
  .amdhsa_accum_offset 256
  .amdhsa_group_segment_fixed_size 0
  .amdhsa_kernarg_size 112
  .amdhsa_user_sgpr_count 2
  .amdhsa_user_sgpr_kernarg_segment_ptr 1
  .amdhsa_system_sgpr_workgroup_id_x 1
.end_amdhsa_kernel
"""
    return head + e.text() + tail

if __name__ == "__main__":
    out = sys.argv[1]
    kw = {}
    for a in sys.argv[2:]:
        k, v = a.split("=")
        kw[k] = eval(v)
    open(out, "w").write(gen(**kw))
```

```python
import sys, math
from asmlib import Asm

NAME = "recurrent_scan__compressed_kv_cla__mixer_channel_mlp__decode"
K = NAME + "_kernel"
HEADER = open("cdna_kernels/" + NAME + ".s.ref").read().split("; Override launch geometry")[0] if False else ""

WS_BYTES = 268435456
SPIN = 1 << 17

def f32(x):
    import struct
    return "0x%08x" % struct.unpack("<I", struct.pack("<f", x))[0]

def gen(stamps=False, wsb=0, touch_uk=True, nt="nt", pad=None):
    WS_EPOCH = wsb
    WS_Q = wsb + 4096
    WS_H3 = wsb + 0x40000
    WS_HM = WS_H3 + 128 * 24576
    WS_H5M = WS_HM + 128 * 6144
    WS_H5S = WS_H5M + 96 * 8192
    STAMP_OFF = 255 << 20
    e = Asm()
    nst = [0]
    def stamp(k):
        if stamps or (pad and (k == 0 or k == pad[1])): e(f"s_memrealtime s[{64 + 2 * k}:{65 + 2 * k}]")
    def srd(n, size):
        e(f"s_mov_b32 s{n + 2}, {size}\ns_mov_b32 s{n + 3}, 0x20000")
    sX, sU, sW, sT = "s3", "s33", "s34", "s36"
    TP = "s[36:37]"
    def rbf(dst, src):
        e(f"v_cvt_pk_bf16_f32 {dst}, {src}, {src}\nv_and_b32 {dst}, 0xffff0000, {dst}")
    def make_tag():
        e(f"s_mul_i32 s36, s35, 0x41c64e6d\ns_add_u32 s36, s36, 0x3c6ef35f\ns_mul_i32 s37, s36, 0x2c9277b5\ns_add_u32 s37, s37, 0xac564b05")
    def red16(v0, t):
        e(f"""v_permlane32_swap_b32 v{v0}, v{v0+2}
              v_permlane32_swap_b32 v{v0+1}, v{v0+3}
              v_add_f32 v{v0}, v{v0}, v{v0+2}
              v_add_f32 v{v0+1}, v{v0+1}, v{v0+3}
              v_permlane16_swap_b32 v{v0}, v{v0+1}
              v_add_f32 v{v0}, v{v0}, v{v0+1}
              v_add_f32_dpp v{v0}, v{v0}, v{v0} row_ror:4 row_mask:0xf bank_mask:0xf
              v_add_f32_dpp v{v0}, v{v0}, v{v0} row_ror:8 row_mask:0xf bank_mask:0xf""")
    def d9_addrs(vlin, vrow_out, mul, shift, vt):
        e(f"v_lshrrev_b32 v{vt}, 3, v1\nv_lshlrev_b32 v{vt+1}, 4, v1\ns_mov_b32 s50, {mul}")
        for i in range(9):
            e(f"""v_add_u32 v{vt+2}, {8 * i}, v{vt}
                  v_mul_u32_u24 v{vt+2}, 57, v{vt+2}
                  v_bfe_u32 v{vt+3}, v{vt+2}, 10, 2
                  v_lshlrev_b32 v{vt+3}, 5, v{vt+3}
                  v_xor_b32 v{vt+3}, v{vt+3}, v{vt+1}""")
            dst = vlin + i if vlin is not None else vt + 3
            if (i >> 2): e(f"v_add_u32 v{dst}, {(i >> 2) * 4096}, v{vt+3}")
            elif vlin is not None: e(f"v_mov_b32 v{dst}, v{vt+3}")
            e(f"v_lshrrev_b32 v{vt+2}, {9 + shift}, v{vt+2}\nv_mad_u32_u24 v{vrow_out + i}, v{vt+2}, s50, v{dst}")
    def dma9(va, srdn, soff, m0, n=9):
        for i in range(n):
            if i == 0: e(f"s_mov_b32 m0, {m0}")
            elif i % 4 == 0: e(f"s_add_u32 m0, m0, 4096")
            off = f" offset:{(i & 3) * 1024}" if i & 3 else ""
            e(f"buffer_load_dwordx4 v{va + i}, s[{srdn}:{srdn+3}], {soff} offen{off} {nt} lds")
    def t9_addrs(vT, vT16, base16, vt):
        e(f"""v_lshrrev_b32 v{vt}, 2, v1            ; 4g+r
              v_bfe_u32 v{vt+1}, v1, 3, 2            ; sw = 2(g&1)+(r>>1)
              v_and_b32 v{vt+2}, 3, v1
              v_lshlrev_b32 v{vt+2}, 3, v{vt+2}      ; 8*(l&3)
              v_mul_u32_u24 v{vt+3}, 1152, v{vt}
              v_add_u32 v{vt+3}, v{vt+3}, v{vt+2}
              v_and_b32 v{vt}, 3, v{vt}              ; r
              v_mul_u32_u24 v{vt+4}, 1152, v{vt}
              v_add_u32 v{vt+4}, v{vt+4}, v{vt+2}
              v_add_u32 v{vt+4}, {base16 + 32 * 1152}, v{vt+4}
              v_lshrrev_b32 v{vt}, 1, v{vt}          ; r>>1
              s_mul_i32 s50, {sW}, 9""")
        for m in range(4):
            e(f"""s_and_b32 s51, s50, 3
                  s_lshr_b32 s52, s50, 2
                  s_lshl_b32 s52, s52, 7
                  v_xor_b32 v{vt+2}, s51, v{vt+1}
                  v_lshl_add_u32 v{vt+2}, v{vt+2}, 5, v{vt+3}
                  v_add_u32 v{vT+m}, s52, v{vt+2}
                  v_xor_b32 v{vt+2}, s51, v{vt}
                  v_lshl_add_u32 v{vt+2}, v{vt+2}, 5, v{vt+4}
                  v_add_u32 v{vT16+m}, s52, v{vt+2}
                  s_add_u32 s50, s50, 1""")
    def gemv36(vT, off, vT16, vact, vfr, vacc, vrec, vst, astride):
        e(f"ds_read2_b64 v[{vrec}:{vrec+3}], v{vact} offset1:4")
        e(f"v_and_b32 v{vrec+6}, 48, v1\nv_lshrrev_b32 v{vrec+6}, 1, v{vrec+6}\nv_sub_u32 v{vrec+6}, v{vact}, v{vrec+6}")
        e(f"ds_read_b64 v[{vrec+4}:{vrec+5}], v{vrec+6} offset:64")
        for t in range(9):
            m, z = t & 3, t >> 2
            e(f"ds_read_b64_tr_b16 v[{vfr+6*t}:{vfr+6*t+1}], v{vT+m} offset:{off + z * 128}")
            e(f"ds_read_b64_tr_b16 v[{vfr+6*t+2}:{vfr+6*t+3}], v{vT+m} offset:{off + 18432 + z * 128}")
            e(f"ds_read_b64_tr_b16 v[{vfr+6*t+4}:{vfr+6*t+5}], v{vT16+m} offset:{z * 128}")
        e(f"v_cmp_gt_u32 vcc, 16, v1\ns_waitcnt lgkmcnt(0)")
        e(f"v_cndmask_b32 v{vrec+4}, 0, v{vrec+4}, vcc\nv_cndmask_b32 v{vrec+5}, 0, v{vrec+5}, vcc")
        for t in range(9):
            e(f"v_mfma_f32_16x16x32_bf16 v[{vacc+4*t}:{vacc+4*t+3}], v[{vrec}:{vrec+3}], v[{vfr+6*t}:{vfr+6*t+3}], 0")
        for t in range(9):
            e(f"v_mfma_f32_16x16x16_bf16 v[{vacc+4*t}:{vacc+4*t+3}], v[{vrec+4}:{vrec+5}], v[{vfr+6*t+4}:{vfr+6*t+5}], v[{vacc+4*t}:{vacc+4*t+3}]")
        e("s_mov_b32 exec_hi, 0")
        for a in range(3):
            g = vrec + 8 + 4 * a
            for t in range(3): e(f"v_mov_b32 v{g+t}, v{vacc + 4 * (3 * a + t)}")
            e(f"v_mov_b32 v{g+3}, {sT}\ns_mov_b32 s50, {a * astride}")
            e(f"buffer_store_dwordx4 v[{g}:{g+3}], v{vst}, s[4:7], s50 offen sc1")
        e("s_mov_b32 exec_hi, -1")
    def h5_store_addr(vst, base, vt):
        e(f"""v_bfe_u32 v{vt}, v1, 2, 3              ; b*4+q
              v_and_b32 v{vt+1}, 3, v1
              v_lshlrev_b32 v{vt}, 13, v{vt}
              v_lshl_add_u32 v{vt}, v{vt+1}, 4, v{vt}
              s_mul_i32 s50, {sW}, {24 * 8192}
              s_lshl_b32 s51, {sX}, 10
              s_lshl_b32 s52, {sU}, 6
              s_add_u32 s50, s50, s51
              s_add_u32 s50, s50, s52
              s_add_u32 s50, s50, {base}
              v_add_u32 v{vst}, s50, v{vt}""")

    e(f"{K}:")
    stamp(0)
    if stamps:
        for k in range(1, 16): e(f"s_mov_b32 s{64 + 2 * k}, 0")
    e(f"""s_load_dwordx2 s[4:5], s[0:1], 104
          s_load_dwordx2 s[12:13], s[0:1], 24
          s_load_dwordx2 s[28:29], s[0:1], 0
          s_cmp_ge_u32 s2, 256
          s_cbranch_scc1 L_end
          v_lshrrev_b32 v2, 6, v0
          v_and_b32 v1, 63, v0
          s_and_b32 {sX}, s2, 7
          v_readfirstlane_b32 {sW}, v2
          s_lshr_b32 {sU}, s2, 4
          s_lshr_b32 s38, {sU}, 2
          s_lshl2_add_u32 s38, {sX}, s38
          s_and_b32 s39, {sU}, 3                  ; j""")
    srd(4, WS_BYTES); srd(12, 512 * 8192); srd(28, 2304)
    e("s_bitcmp1_b32 s2, 3\ns_cbranch_scc1 L_qv")

    QX, PX, MX, LX, HX, FX = 131072, 147456, 151552, 151808, 152064, 152320
    vDA = 8
    e(f"""s_load_dwordx2 s[8:9], s[0:1], 8
          s_lshr_b32 s48, {sU}, 1
          s_lshl3_add_u32 s48, {sX}, s48          ; cidx
          s_and_b32 s49, {sU}, 1                  ; hh
          v_lshlrev_b32 v3, 4, v1
          s_lshl_b32 s50, s48, 18
          s_lshl_b32 s51, {sW}, 14
          s_add_u32 s50, s50, s51
          s_lshl_b32 s51, s49, 17
          s_add_u32 s44, s50, s51
          s_xor_b32 s45, s44, 0x20000
          s_lshl_b32 s46, {sW}, 15""")
    srd(8, 2 * 8192 * 1024)
    FT = [2 * ((r & 7) ^ (4 * (r >> 3))) + (r >> 3) for r in range(16)]
    for r in range(16):
        e(f"v_xor_b32 v{vDA + r}, {FT[r] * 16 + (r >> 2) * 4096}, v3")
    if touch_uk:
        e(f"""v_lshrrev_b32 v4, 1, v0
              v_and_b32 v5, 1, v0
              v_lshlrev_b32 v4, 13, v4
              v_lshl_add_u32 v4, v5, 7, v4
              s_lshl_b32 s50, s39, 20
              s_lshl_b32 s51, s38, 8
              s_add_u32 s50, s50, s51""")
    e("s_waitcnt lgkmcnt(0)")
    e(f"s_load_dword s35, s[4:5], {WS_EPOCH}" if WS_EPOCH < (1 << 20) else f"s_mov_b32 s51, {WS_EPOCH}\ns_load_dword s35, s[4:5], s51")
    if touch_uk: e(f"buffer_load_dword v5, v4, s[12:15], s50 offen {nt}")
    def slot_dma(soff, m0expr):
        for r in range(16):
            if r == 0: e(m0expr)
            elif r % 4 == 0: e("s_add_u32 m0, m0, 4096")
            off = f" offset:{(r & 3) * 1024}" if r & 3 else ""
            e(f"buffer_load_dwordx4 v{vDA + r}, s[8:11], {soff} offen{off} {nt} lds")
    stamp(10)
    e("s_mov_b32 s47, s46\nL_kv_ld:")
    slot_dma("s44", "s_mov_b32 m0, s47")
    e(f"""s_add_u32 s44, s44, 0x10000
          s_xor_b32 s47, s47, 0x4000
          s_cmp_lg_u32 s47, s46
          s_cbranch_scc1 L_kv_ld
          s_branch L_kv2""")

    R0, R1, R2, R3 = 0, 36864, 73728, 110592
    XN, YN, QQ, CX = 152576, 157184, 159488, 160000
    vDQ, vTR = 4, 8
    e("L_qv:")
    e(f"""s_load_dwordx2 s[8:9], s[0:1], 16
          v_lshrrev_b32 v2, 4, v1                 ; g
          s_and_b32 s50, {sW}, 1
          s_lshl_b32 s50, s50, 3
          v_lshl_add_u32 v3, v2, 1, s50
          v_xor_b32 v3, v3, v1
          v_and_b32 v3, 15, v3
          v_lshlrev_b32 v3, 4, v3
          v_lshl_add_u32 v3, v2, 13, v3
          s_lshl_b32 s50, {sW}, 15
          s_lshl_b32 s51, s38, 8
          s_add_u32 s50, s50, s51
          v_add_u32 v{vDQ}, s50, v3
          v_add_u32 v{vDQ+1}, {131072 - 1024}, v{vDQ}
          s_mul_i32 s48, s39, 9
          s_add_u32 s48, s48, 1
          s_lshr_b32 s48, s48, 1
          s_lshl_b32 s44, s48, 18
          s_lshl_b32 s46, {sW}, 11
          v_lshrrev_b32 v6, 5, v1
          v_and_b32 v7, 31, v1
          v_mul_u32_u24 v7, 36, v7
          s_movk_i32 s50, 1152
          v_mad_u32_u24 v16, v6, s50, v7""")
    srd(8, 576 * 8192)
    e("s_waitcnt lgkmcnt(0)")
    e(f"s_load_dword s35, s[4:5], {WS_EPOCH}" if WS_EPOCH < (1 << 20) else f"s_mov_b32 s51, {WS_EPOCH}\ns_load_dword s35, s[4:5], s51")
    e(f"""s_cmp_lg_u32 {sW}, 0
          s_cbranch_scc1 L_qv_nox
          buffer_load_dwordx3 v[20:22], v16, s[28:31], 0 offen
          buffer_load_dwordx3 v[24:26], v16, s[28:31], 0 offen offset:12
          buffer_load_dwordx3 v[28:30], v16, s[28:31], 0 offen offset:24
          L_qv_nox:""")
    stamp(12)
    e(f"""s_mov_b32 s47, s46
          L_qv_ld:
          s_mov_b32 m0, s47
          s_add_u32 s47, s47, 8192
          buffer_load_dwordx4 v{vDQ}, s[8:11], s44 offen {nt} lds
          buffer_load_dwordx4 v{vDQ+1}, s[8:11], s44 offen offset:1024 {nt} lds
          s_add_u32 s44, s44, 0x40000
          s_cmp_eq_u32 s44, {18 << 18}
          s_cselect_b32 s44, 0, s44
          s_cmp_eq_u32 s47, {4 * 8192}
          s_cbranch_scc1 L_ln
          L_ln_back:
          s_cmp_lt_u32 s47, {18 * 8192}
          s_cbranch_scc1 L_qv_ld
          s_branch L_qv2""")
    e("L_ln:")
    xs = [20, 21, 22, 24, 25, 26, 28, 29, 30]
    F = 64
    e(f"""v_mad_u32_u24 v17, v6, s50, v16
          v_add_u32 v17, {XN}, v17
          s_mov_b32 s51, 0
          s_waitcnt vmcnt(8)""")
    stamp(10)
    e("L_ln_loop:")
    for i, r in enumerate(xs):
        e(f"v_lshlrev_b32 v{F+2*i}, 16, v{r}\nv_and_b32 v{F+2*i+1}, 0xffff0000, v{r}")
    def allred32(v, t):
        for s_ in (8, 4, 2, 1):
            e(f"v_add_f32_dpp v{v}, v{v}, v{v} row_ror:{s_} row_mask:0xf bank_mask:0xf")
        e(f"v_mov_b32 v{t}, v{v}\nv_permlane16_swap_b32 v{v}, v{t}\nv_add_f32 v{v}, v{v}, v{t}")
    e(f"v_add_f32 v18, v{F}, v{F+1}")
    for i in range(2, 18): e(f"v_add_f32 v18, v18, v{F+i}")
    allred32(18, 19)
    e(f"v_mul_f32 v18, {f32(1 / 576)}, v18        ; mean")
    for i in range(18):
        e(f"v_sub_f32 v23, v{F+i}, v18")
        e(f"v_mul_f32 v27, v23, v23" if i == 0 else "v_fmac_f32 v27, v23, v23")
    allred32(27, 19)
    e(f"v_mul_f32 v27, {f32(1 / 576)}, v27")
    rbf("v18", "v18"); rbf("v27", "v27")
    e(f"v_add_f32 v27, {f32(1e-5)}, v27")
    rbf("v27", "v27")
    e("v_sqrt_f32 v27, v27")
    rbf("v27", "v27")
    e("v_rcp_f32 v27, v27")
    for i, r in enumerate(xs):
        a, b = F + 2 * i, F + 2 * i + 1
        e(f"""v_sub_f32 v{a}, v{a}, v18
              v_sub_f32 v{b}, v{b}, v18
              v_cvt_pk_bf16_f32 v{r}, v{a}, v{b}
              v_lshlrev_b32 v{a}, 16, v{r}
              v_and_b32 v{b}, 0xffff0000, v{r}
              v_mul_f32 v{a}, v{a}, v27
              v_mul_f32 v{b}, v{b}, v27
              v_cvt_pk_bf16_f32 v{r}, v{a}, v{b}
              ds_write_b32 v17, v{r} offset:{4 * i}""")
    stamp(11)
    e("s_cmp_lg_u32 s51, 0\ns_cbranch_scc1 L_ln_back")
    for i, r in enumerate(xs): e(f"ds_write_b32 v17, v{r} offset:{1152 + 4 * i}")
    e(f"v_add_u32 v17, {YN}, v16\ns_mov_b32 s51, 1\ns_branch L_ln_loop")

    e("L_qv2:")
    vUK = 32
    e(f"""s_load_dwordx2 s[16:17], s[0:1], 40
          s_load_dwordx2 s[20:21], s[0:1], 32
          s_load_dwordx2 s[24:25], s[0:1], 56
          v_bfe_u32 v6, v1, 2, 2                  ; gamma = (l&15)>>2
          v_and_b32 v7, 3, v1
          v_lshl_add_u32 v7, v6, 3, v7            ; 8*gamma + r
          v_lshlrev_b32 v7, 13, v7
          v_lshl_add_u32 v7, v2, 4, v7
          s_lshl_b32 s50, s39, 20
          s_lshl_b32 s51, {sW}, 18
          s_add_u32 s50, s50, s51
          s_lshl_b32 s51, s38, 8
          s_add_u32 s50, s50, s51
          s_add_u32 s51, s50, 0x8000""")
    for ee in range(2):
        for k in range(4):
            r = vUK + (ee * 4 + k) * 4
            e(f"buffer_load_dwordx4 v[{r}:{r+3}], v7, s[12:15], s{50 + ee} offen offset:{k * 64}")
    stamp(1)
    srd(16, 4096 * 1152); srd(20, 512 * 8192); srd(24, 576 * 9216)
    e(f"""v_bfe_u32 v16, v1, 2, 3                 ; 4(g&1)+r
          v_lshlrev_b32 v16, 5, v16
          v_and_b32 v17, 3, v1
          v_lshl_add_u32 v16, v17, 3, v16
          v_lshl_add_u32 v16, v6, 8, v16
          v_lshl_add_u32 v{vTR}, v2, 11, v16""")
    for ct in range(1, 8): e(f"v_xor_b32 v{vTR + ct}, {32 * ct}, v{vTR}")
    e(f"""s_lshl_b32 s50, {sW}, 6
          v_xor_b32 v16, s50, v{vTR}
          v_xor_b32 v17, s50, v{vTR+1}
          v_add_u32 v18, 0x10000, v16
          v_add_u32 v19, 0x10000, v17
          v_add_u32 v20, 0x20000, v16
          v_add_u32 v21, 0x20000, v17
          v_and_b32 v22, 1, v1
          v_mul_u32_u24 v23, 2304, v22
          v_lshl_add_u32 v23, v2, 3, v23
          s_lshl_b32 s50, s48, 6
          s_add_u32 s50, s50, {XN}
          v_add_u32 v23, s50, v23
          v_lshlrev_b32 v24, 8, v22
          v_lshl_add_u32 v25, v2, 4, v24
          v_add_u32 v25, {QQ}, v25
          v_lshl_add_u32 v24, v2, 3, v24
          s_lshl_b32 s50, {sW}, 6
          s_add_u32 s50, s50, {QQ}
          v_add_u32 v24, s50, v24
          s_waitcnt lgkmcnt(0)""")
    make_tag()
    e(f"""v_lshlrev_b32 v26, 16, v22
          v_lshl_add_u32 v26, v2, 4, v26
          s_lshr_b32 s50, s38, 4
          s_lshl2_add_u32 s50, s50, s39
          s_lshl_b32 s50, s50, 13
          s_lshl_b32 s51, {sW}, 11
          s_add_u32 s50, s50, s51
          s_and_b32 s51, s38, 15
          s_lshl_b32 s51, s51, 6
          s_add_u32 s50, s50, s51
          s_add_u32 s50, s50, {WS_Q}
          v_add_u32 v26, s50, v26
          v_mov_b32 v80, s36
          v_mov_b32 v81, s37
          v_mov_b32 v86, s36
          v_mov_b32 v87, s37""")
    aXN, aWQ = 0, 72
    phases = [(0, 12, 20), (12, 15, 14), (15, 18, 8)]
    for pi, (s0, s1, vm) in enumerate(phases):
        e(f"s_waitcnt vmcnt({vm})\ns_barrier")
        stamp(13 + pi)
        if pi == 0:
            for sg in range(18):
                e(f"ds_read2_b64 a[{aXN+4*sg}:{aXN+4*sg+3}], v23 offset0:{8*sg} offset1:{8*sg+4}")
        for sg in range(s0, s1):
            for c in range(2):
                for u in range(2):
                    r = aWQ + sg * 8 + c * 4 + u * 2
                    e(f"ds_read_b64_tr_b16 a[{r}:{r+1}], v{16 + 2 * (sg >> 3) + c} offset:{(sg & 7) * 8192 + u * 1024}")
            if sg - s0 >= 2:
                t = sg - 2
                e("s_waitcnt lgkmcnt(8)")
                for c in range(2):
                    r = aWQ + t * 8 + c * 4
                    e(f"v_mfma_f32_16x16x32_bf16 v[{64+4*c}:{67+4*c}], a[{r}:{r+3}], a[{aXN+4*t}:{aXN+4*t+3}], " + ("0" if t == 0 else f"v[{64+4*c}:{67+4*c}]"))
        for t, lg in ((s1 - 2, 4), (s1 - 1, 0)):
            e(f"s_waitcnt lgkmcnt({lg})")
            for c in range(2):
                r = aWQ + t * 8 + c * 4
                e(f"v_mfma_f32_16x16x32_bf16 v[{64+4*c}:{67+4*c}], a[{r}:{r+3}], a[{aXN+4*t}:{aXN+4*t+3}], v[{64+4*c}:{67+4*c}]")
    stamp(2)
    e(f"""v_cvt_pk_bf16_f32 v72, v64, v65
          v_cvt_pk_bf16_f32 v73, v66, v67
          v_cvt_pk_bf16_f32 v74, v68, v69
          v_cvt_pk_bf16_f32 v75, v70, v71
          ds_write2_b64 v24, v[72:73], v[74:75] offset1:4
          s_waitcnt lgkmcnt(0)
          s_barrier""")
    for k in range(4): e(f"ds_read_b128 v[{88+4*k}:{91+4*k}], v25 offset:{64 * k}")
    e("s_waitcnt vmcnt(0)")
    for k in range(4):
        e(f"s_waitcnt lgkmcnt({3 - k})")
        for ee in range(2):
            r = vUK + (ee * 4 + k) * 4
            e(f"v_mfma_f32_16x16x32_bf16 v[{64+4*ee}:{67+4*ee}], v[{r}:{r+3}], v[{88+4*k}:{91+4*k}], " + ("0" if k == 0 else f"v[{64+4*ee}:{67+4*ee}]"))
    e(f"s_mov_b32 s50, {f32(128 ** -0.5 * math.log2(math.e))}")
    for i in range(8): e(f"v_mul_f32 v{64+i}, s50, v{64+i}")
    for i in range(4): e(f"v_cvt_pk_bf16_f32 v{82+i}, v{64+2*i}, v{65+2*i}")
    e(f"""s_mov_b32 exec_lo, 0x00030003
          s_mov_b32 exec_hi, 0x00030003
          buffer_store_dwordx4 v[80:83], v26, s[4:7], 0 offen sc1
          buffer_store_dwordx4 v[84:87], v26, s[4:7], 0 offen offset:1024 sc1
          s_mov_b64 exec, -1""")
    stamp(3)
    vL, vW1, vT, vT2, vT16 = 32, 42, 52, 56, 60
    d9_addrs(vL, vW1, 9216 - 1152, 0, 16)
    e(f"""s_mul_i32 s44, {sU}, {36 * 9216}
          s_mul_i32 s50, {sX}, 1152
          s_add_u32 s44, s44, s50
          s_cmp_lg_u32 {sW}, 0
          s_cbranch_scc1 L_qv_nx1
          s_add_u32 s45, s44, {4 * 73728}
          s_mov_b32 s47, {R3 + 4 * 9216}""")
    dma9(vW1, 24, "s45", "s47", 5)
    e(f"""L_qv_nx1:
          s_mul_i32 s50, {sW}, 73728
          s_add_u32 s44, s44, s50
          s_mul_i32 s49, {sW}, 9216
          s_add_u32 s47, s49, {R3}""")
    dma9(vW1, 24, "s44", "s47")
    e(f"s_mul_i32 s53, s38, 147456\ns_add_u32 s53, s53, s49")
    def wo_dma(sg, reg):
        e(f"s_xor_b32 s50, s39, {sg}\ns_mul_i32 s50, s50, 36864\ns_add_u32 s44, s53, s50\ns_add_u32 s47, s49, {reg}")
        dma9(vL, 16, "s44", "s47")
    wo_dma(0, R0)
    e(f"s_lshl_b32 s44, s39, 20\ns_add_u32 s47, s46, {R2}")
    for k in range(4):
        e(f"""s_mov_b32 m0, s47
              s_add_u32 s47, s47, 8192
              buffer_load_dwordx4 v{vDQ}, s[20:23], s44 offen {nt} lds
              buffer_load_dwordx4 v{vDQ+1}, s[20:23], s44 offen offset:1024 {nt} lds
              s_add_u32 s44, s44, 0x40000""")
    t9_addrs(vT, vT16, R3, 16)
    for m in range(4): e(f"v_add_u32 v{vT2+m}, {R2}, v{vT+m}")
    for ct in range(8): e(f"v_add_u32 v{vTR+ct}, {R2}, v{vTR+ct}")
    e(f"""v_bfe_u32 v16, v1, 2, 1
          v_mul_u32_u24 v16, 1152, v16
          v_lshl_add_u32 v16, v2, 3, v16
          s_mul_i32 s50, {sU}, 72
          s_add_u32 s50, s50, {YN}
          v_add_u32 v16, s50, v16
          v_mul_u32_u24 v17, 6144, v6
          v_lshl_add_u32 v17, v2, 10, v17
          v_and_b32 v18, 3, v1
          v_lshl_add_u32 v17, v18, 4, v17
          s_lshl2_add_u32 s50, {sX}, {sW}
          s_mul_i32 s50, s50, {4 * 6144}
          s_lshl_b32 s51, {sU}, 6
          s_add_u32 s50, s50, s51
          s_add_u32 s50, s50, {WS_HM}
          v_add_u32 v17, s50, v17""")
    wo_dma(1, R1)
    e("s_waitcnt vmcnt(26)\ns_barrier")
    gemv36(vT2, R3 - R2, vT16, 16, 64, 120, 160, 17, 2048)
    stamp(4)
    def wo_frag(sg, t):
        i = sg * 9 + t
        return ("a", 128 + 4 * i) if i < 32 else ("v", 240 + 4 * (i - 32))
    def wo_read(sg):
        base, off = (vT, sg * 36864) if sg < 2 else (vT2, (sg - 2) * 36864)
        for t in range(9):
            f, r = wo_frag(sg, t)
            for u in range(2):
                e(f"ds_read_b64_tr_b16 {f}[{r+2*u}:{r+2*u+1}], v{base + (t & 3)} offset:{off + u * 18432 + (t >> 2) * 128}")
    e("s_waitcnt vmcnt(12)\ns_barrier")
    for k in range(4):
        for ct in range(8):
            for u in range(2):
                r = (k * 8 + ct) * 4 + 2 * u
                e(f"ds_read_b64_tr_b16 a[{r}:{r+1}], v{vTR + ct} offset:{k * 8192 + u * 1024}")
    e("s_waitcnt lgkmcnt(0)\ns_barrier")
    wo_dma(2, R2); wo_dma(3, R3)
    wo_read(0)
    vH3, vH3b, vBP, vCW, vCR, vS5 = 16, 17, 18, 19, 20, 21
    e(f"""v_and_b32 v22, 15, v1
          v_lshlrev_b32 v23, 6, v22
          v_lshl_add_u32 v23, v2, 4, v23
          s_lshl2_add_u32 s50, s38, s39
          s_mul_i32 s50, s50, 24576
          s_add_u32 s50, s50, {WS_H3}
          s_lshl_b32 s51, {sW}, 10
          s_add_u32 s52, s50, s51
          v_add_u32 v{vH3}, s52, v23
          s_xor_b32 s51, s51, 1024
          s_add_u32 s52, s50, s51
          s_add_u32 s52, s52, {5 * 4096}
          v_add_u32 v{vH3b}, s52, v23
          v_lshlrev_b32 v{vBP}, 4, v2
          v_xor_b32 v23, s39, v2
          v_lshlrev_b32 v23, 6, v23
          v_lshl_add_u32 v23, v22, 1, v23
          s_lshl_b32 s50, {sW}, 8
          s_add_u32 s50, s50, {CX}
          v_add_u32 v{vCW}, s50, v23
          v_bfe_u32 v23, v1, 2, 1
          v_and_b32 v22, 1, v1
          v_lshl_add_u32 v23, v23, 1, v22
          v_lshlrev_b32 v23, 8, v23
          v_lshl_add_u32 v23, v2, 3, v23
          v_add_u32 v{vCR}, {CX}, v23""")
    h5_store_addr(vS5, WS_H5S, 22)
    e("s_waitcnt vmcnt(18)\ns_barrier"); wo_read(1)
    e("s_waitcnt vmcnt(9)\ns_barrier"); wo_read(2)
    e("s_waitcnt vmcnt(0)\ns_barrier"); wo_read(3)
    stamp(5)
    G = 64
    e(f"s_mov_b32 s54, 0\nL_h3:")
    for i in range(6):
        e(f"s_mov_b32 s50, {i * 4096}\nbuffer_load_dwordx4 v[{G+4*i}:{G+4*i+3}], v{vH3}, s[4:7], s50 offen sc1")
    e(f"""buffer_load_dwordx4 v[{G+24}:{G+27}], v{vH3b}, s[4:7], 0 offen sc1
          s_add_u32 s54, s54, 1
          s_cmp_gt_u32 s54, {SPIN}
          s_cbranch_scc1 L_h3_done
          s_waitcnt vmcnt(0)
          v_bitop3_b32 v22, v{G+3}, v{G+7}, {sT} bitop3:0x7e
          v_bitop3_b32 v23, v{G+11}, v{G+15}, {sT} bitop3:0x7e
          v_bitop3_b32 v24, v{G+19}, v{G+23}, {sT} bitop3:0x7e
          v_bitop3_b32 v25, v{G+22}, v{G+26}, s37 bitop3:0x7e
          v_xor_b32 v26, {sT}, v{G+27}
          v_or3_b32 v22, v22, v23, v24
          v_or3_b32 v22, v22, v25, v26
          v_cmp_ne_u32 vcc, 0, v22
          s_and_b64 exec, exec, vcc
          s_cbranch_execnz L_h3
          L_h3_done:
          s_mov_b64 exec, -1
          s_waitcnt vmcnt(0) lgkmcnt(0)""")
    stamp(6)
    e(f"""v_mov_b32 v{G+3}, v{G+16}
          v_mov_b32 v{G+7}, v{G+17}
          v_mov_b32 v{G+11}, v{G+18}
          v_mov_b32 v{G+15}, v{G+20}""")
    D2, AC = 96, 128
    side = []
    side.append(f"v_max_f32 v22, v{G+21}, v{G+25}")
    for s_ in (8, 4, 2, 1): side.append(f"v_max_f32_dpp v22, v22, v22 row_ror:{s_} row_mask:0xf bank_mask:0xf")
    side += [f"v_sub_f32 v23, v{G+21}, v22\nv_sub_f32 v24, v{G+25}, v22", "v_exp_f32 v23, v23", "v_exp_f32 v24, v24", "v_add_f32 v24, v23, v24"]
    for s_ in (8, 4, 2, 1): side.append(f"v_add_f32_dpp v24, v24, v24 row_ror:{s_} row_mask:0xf bank_mask:0xf")
    side += ["v_rcp_f32 v24, v24", "v_mul_f32 v23, v23, v24"]
    side += [f"ds_bpermute_b32 v{28+r}, v{vBP}, v23 offset:{4 * r}" for r in range(4)]
    def fma_tile(ct):
        return [f"v_mul_f32 v{AC+ct}, v28, v{D2+4*ct}\nv_fmac_f32 v{AC+ct}, v29, v{D2+4*ct+1}", f"v_fmac_f32 v{AC+ct}, v30, v{D2+4*ct+2}\nv_fmac_f32 v{AC+ct}, v31, v{D2+4*ct+3}"]
    n = 0
    for ct in range(8):
        for k in range(4):
            r = (k * 8 + ct) * 4
            e(f"v_mfma_f32_16x16x32_bf16 v[{D2+4*ct}:{D2+4*ct+3}], v[{G+4*k}:{G+4*k+3}], a[{r}:{r+3}], " + ("0" if k == 0 else f"v[{D2+4*ct}:{D2+4*ct+3}]"))
            n += 1
            if side: e(side.pop(0))
            if n == 22:
                side = ["s_waitcnt lgkmcnt(0)"]
                for c2 in range(4): side += fma_tile(c2)
    assert not side, side
    for c2 in range(4, 8):
        for s_ in fma_tile(c2): e(s_)
    for k in range(4): e(f"v_permlane32_swap_b32 v{AC+k}, v{AC+k+4}")
    for k in range(4): e(f"v_add_f32 v{AC+k}, v{AC+k}, v{AC+k+4}")
    for k in range(2): e(f"v_permlane16_swap_b32 v{AC+k}, v{AC+k+2}")
    for k in range(2): e(f"v_add_f32 v{AC+k}, v{AC+k}, v{AC+k+2}")
    e(f"""v_cvt_pk_bf16_f32 v{AC}, v{AC}, v{AC+1}
          ds_write_b16 v{vCW}, v{AC}
          ds_write_b16_d16_hi v{vCW}, v{AC} offset:32
          s_waitcnt lgkmcnt(0)
          s_barrier""")
    CA, D3, GR = 64, 140, 96
    for sg in range(4): e(f"ds_read2_b64 v[{CA+4*sg}:{CA+4*sg+3}], v{vCR} offset0:{8*sg} offset1:{8*sg+4}")
    for a in range(3): e(f"v_mov_b32 v{GR+4*a+3}, {sT}")
    e("s_waitcnt lgkmcnt(0)")
    def emit_out(a):
        for t in range(3):
            r = D3 + 4 * (3 * a + t)
            e(f"v_add_f32 v{GR+4*a+t}, v{r}, v{r+1}")
        e(f"s_mov_b32 s50, {a * 65536}\ns_mov_b32 exec_hi, 0\nbuffer_store_dwordx4 v[{GR+4*a}:{GR+4*a+3}], v{vS5}, s[4:7], s50 offen sc1\ns_mov_b32 exec_hi, -1")
    for t in range(9):
        for sg in range(4):
            f, r = wo_frag(sg, t)
            e(f"v_mfma_f32_16x16x32_bf16 v[{D3+4*t}:{D3+4*t+3}], v[{CA+4*sg}:{CA+4*sg+3}], {f}[{r}:{r+3}], " + ("0" if sg == 0 else f"v[{D3+4*t}:{D3+4*t+3}]"))
        if t in (4, 7): emit_out((t - 2) // 3)
    emit_out(2)
    stamp(7)
    e("s_branch L_fin")

    e("L_kv2:")
    stamp(1)
    vQK, vPV = 24, 28
    vQL, vXW, vMW, vMR, vRS = 44, 45, 46, 47, 48
    QF, QS, O, S, P, REC = 64, 128, 160, 192, 200, 128
    vM, vLs = 50, 51
    e(f"""s_load_dwordx2 s[16:17], s[0:1], 72
          s_load_dwordx2 s[20:21], s[0:1], 64
          s_load_dwordx2 s[24:25], s[0:1], 80
          s_load_dwordx2 s[40:41], s[0:1], 88
          v_lshrrev_b32 v2, 4, v1                 ; g
          v_and_b32 v4, 15, v1                    ; rho
          v_lshrrev_b32 v6, 3, v4
          v_lshlrev_b32 v7, 2, v6
          v_xor_b32 v7, v7, v4
          v_and_b32 v7, 7, v7
          v_lshl_or_b32 v7, v7, 1, v6             ; f(rho)
          v_xor_b32 v7, v7, v2
          v_lshlrev_b32 v7, 4, v7
          v_lshl_add_u32 v7, v4, 10, v7
          v_add_u32 v{vQK}, s46, v7""")
    for m in range(1, 4): e(f"v_xor_b32 v{vQK+m}, {64 * m}, v{vQK}")
    e(f"""v_lshrrev_b32 v52, 2, v1                ; key = 4g+r
          v_lshrrev_b32 v6, 5, v1
          v_lshlrev_b32 v7, 2, v6
          v_xor_b32 v7, v7, v52
          v_and_b32 v7, 7, v7
          v_lshl_or_b32 v7, v7, 1, v6             ; f(key)
          v_bfe_u32 v6, v1, 1, 1
          v_xor_b32 v7, v7, v6
          v_lshlrev_b32 v7, 4, v7
          v_and_b32 v6, 1, v1
          v_lshl_add_u32 v7, v6, 3, v7
          v_lshl_add_u32 v7, v52, 10, v7
          s_lshl_b32 s50, {sW}, 8
          v_add_u32 v{vPV}, s50, v7""")
    for ct in range(1, 8): e(f"v_xor_b32 v{vPV+ct}, {32 * ct}, v{vPV}")
    for ct in range(8): e(f"v_add_u32 v{vPV+8+ct}, 0x10000, v{vPV+ct}")
    e(f"""v_lshlrev_b32 v6, 6, v4
          v_lshl_add_u32 v6, v2, 4, v6            ; rho*64 + g*16
          s_lshr_b32 s50, s48, 5
          s_lshl1_add_u32 s50, s50, s49
          s_lshl2_add_u32 s50, s50, {sW}
          s_lshl_b32 s50, s50, 13
          s_add_u32 s50, s50, {WS_Q}
          v_add_u32 v{vQL}, s50, v6
          v_add_u32 v{vXW}, {QX}, v3
          v_lshlrev_b32 v6, 4, v4
          v_add_u32 v{vMR}, {MX}, v6
          s_lshl_b32 s50, {sW}, 2
          v_add_u32 v{vMW}, s50, v{vMR}
          v_mul_u32_u24 v6, {4 * 24576}, v4
          v_lshl_add_u32 v6, v2, 4, v6
          s_lshl_b32 s50, s49, 6
          s_add_u32 s50, s50, {sW}
          s_mul_i32 s50, s50, 24576
          s_lshl_b32 s51, s48, 6
          s_add_u32 s50, s50, s51
          s_add_u32 s50, s50, {WS_H3}
          v_add_u32 v{vRS}, s50, v6
          v_mov_b32 v{vM}, 0xff800000
          v_mov_b32 v{vLs}, 0
          s_lshl_b32 s55, {sW}, 12
          s_lshl_b32 s56, {sW}, 10
          v_add_u32 v53, s55, v{vXW}
          v_add_u32 v54, s56, v{vXW}""")
    for i in range(32): e(f"v_mov_b32 v{O+i}, 0")
    srd(16, 4608 * 1152); srd(20, 9216); srd(24, 1152); srd(40, 2304)
    e("s_waitcnt lgkmcnt(0)")
    make_tag()
    def frags(sp):
        for k in range(16):
            r = (sp * 16 + k) * 4
            e(f"ds_read_b128 a[{r}:{r+3}], v{vQK + (k & 3)} offset:{sp * 16384 + (k >> 2) * 256}")
        for k in range(4):
            for ct in range(8):
                r = 128 + (k * 8 + ct) * 4 + 2 * sp
                e(f"ds_read_b64_tr_b16 a[{r}:{r+1}], v{vPV + ct + 8 * (k >> 1)} offset:{(k & 1) * 32768 + sp * 16384}")
    def qloads():
        for i in range(8):
            if i == 4: e("s_movk_i32 s50, 4096")
            e(f"buffer_load_dwordx4 v[{QS+4*i}:{QS+4*i+3}], v{vQL}, s[4:7], {'s50' if i >= 4 else '0'} offen offset:{(i & 3) * 1024} sc1")
    e("s_mov_b32 s57, 0\nL_att:\ns_waitcnt vmcnt(16)\ns_barrier")
    frags(0)
    e("s_cmp_lg_u32 s57, 0\ns_cbranch_scc1 L_att_b1\ns_waitcnt lgkmcnt(0)\ns_barrier")
    stamp(2)
    qloads()
    slot_dma("s45", "s_mov_b32 m0, s46")
    e("s_waitcnt vmcnt(24)\ns_branch L_att_b2\nL_att_b1:\ns_waitcnt vmcnt(0)\nL_att_b2:\ns_barrier")
    frags(1)
    e("s_cmp_lg_u32 s57, 0\ns_cbranch_scc1 L_att_go\ns_waitcnt lgkmcnt(0)\ns_barrier")
    stamp(3)
    e("s_add_u32 s45, s45, 0x10000")
    slot_dma("s45", "s_add_u32 m0, s46, 0x4000")
    e("s_mov_b32 s54, 0\ns_waitcnt vmcnt(32)\nL_q_chk:")
    for t in range(4):
        r = QS + 8 * t
        e(f"v_cmp_ne_u64 vcc, {TP}, v[{r}:{r+1}]" if t == 0 else f"v_cmp_ne_u64 s[50:51], {TP}, v[{r}:{r+1}]\ns_or_b64 vcc, vcc, s[50:51]")
        e(f"v_cmp_ne_u64 s[52:53], {TP}, v[{r+6}:{r+7}]\ns_or_b64 vcc, vcc, s[52:53]")
    e(f"""s_and_b64 exec, exec, vcc
          s_cbranch_execz L_q_ok
          s_add_u32 s54, s54, 1
          s_cmp_gt_u32 s54, {SPIN}
          s_cbranch_scc1 L_q_ok""")
    qloads()
    e("s_waitcnt vmcnt(0)\ns_branch L_q_chk\nL_q_ok:\ns_mov_b64 exec, -1")
    for t in range(4): e(f"ds_write_b128 v53, v[{QS+8*t+2}:{QS+8*t+5}] offset:{1024 * t}")
    e("s_waitcnt lgkmcnt(0)\ns_barrier")
    for k in range(16): e(f"ds_read_b128 v[{QF+4*k}:{QF+4*k+3}], v{vXW} offset:{1024 * k}")
    stamp(4)
    e("L_att_go:\ns_waitcnt lgkmcnt(0)")
    stamp(11)
    for k in range(16):
        for sp in range(2):
            r = (sp * 16 + k) * 4
            e(f"v_mfma_f32_16x16x32_bf16 v[{S+4*sp}:{S+4*sp+3}], a[{r}:{r+3}], v[{QF+4*k}:{QF+4*k+3}], " + ("0" if k == 0 else f"v[{S+4*sp}:{S+4*sp+3}]"))
    stamp(12)
    e(f"""v_max3_f32 v55, v{S}, v{S+1}, v{S+2}
          v_max3_f32 v56, v{S+4}, v{S+5}, v{S+6}
          v_max3_f32 v55, v55, v{S+3}, v{S+7}
          v_max_f32 v55, v55, v56
          v_mov_b32 v56, v55
          v_permlane32_swap_b32 v55, v56
          v_max_f32 v55, v55, v56
          v_mov_b32 v56, v55
          v_permlane16_swap_b32 v55, v56
          v_max_f32 v55, v55, v56
          ds_write_b32 v{vMW}, v55
          s_waitcnt lgkmcnt(0)
          s_barrier
          ds_read_b128 v[56:59], v{vMR}
          s_waitcnt lgkmcnt(0)
          v_max3_f32 v55, v56, v57, v58
          v_max3_f32 v55, v55, v59, v{vM}
          v_sub_f32 v60, v{vM}, v55
          v_mov_b32 v{vM}, v55""")
    for i in range(8): e(f"v_sub_f32 v{S+i}, v{S+i}, v55")
    e("v_exp_f32 v60, v60")
    for i in range(8): e(f"v_exp_f32 v{S+i}, v{S+i}")
    for i in range(4): e(f"v_cvt_pk_bf16_f32 v{56+i}, v{S+2*i}, v{S+2*i+1}")
    e(f"ds_write_b128 v54, v[56:59] offset:{PX - QX}")
    e(f"""v_add_f32 v{S}, v{S}, v{S+1}
          v_add_f32 v{S+2}, v{S+2}, v{S+3}
          v_add_f32 v{S+4}, v{S+4}, v{S+5}
          v_add_f32 v{S+6}, v{S+6}, v{S+7}
          v_add_f32 v{S}, v{S}, v{S+2}
          v_add_f32 v{S+4}, v{S+4}, v{S+6}
          v_add_f32 v{S}, v{S}, v{S+4}
          v_fma_f32 v{vLs}, v{vLs}, v60, v{S}
          v_mov_b32 v55, v{vLs}
          v_mov_b32 v61, v{vLs}
          v_permlane32_swap_b32 v55, v61
          v_add_f32 v55, v55, v61
          v_mov_b32 v61, v55
          v_permlane16_swap_b32 v55, v61
          v_add_f32 v55, v55, v61
          ds_write_b32 v{vMW}, v55 offset:{LX - MX}
          s_waitcnt lgkmcnt(0)
          s_barrier""")
    for k in range(4): e(f"ds_read_b128 v[{P+4*k}:{P+4*k+3}], v{vXW} offset:{PX - QX + 1024 * k}")
    e(f"ds_read_b128 v[56:59], v{vMR} offset:{LX - MX}")
    for i in range(32): e(f"v_mul_f32 v{O+i}, v60, v{O+i}")
    e("s_waitcnt lgkmcnt(0)")
    stamp(13)
    for ct in range(8):
        for k in range(4):
            r = 128 + (k * 8 + ct) * 4
            e(f"v_mfma_f32_16x16x32_bf16 v[{O+4*ct}:{O+4*ct+3}], a[{r}:{r+3}], v[{P+4*k}:{P+4*k+3}], v[{O+4*ct}:{O+4*ct+3}]")
    e("s_add_u32 s57, s57, 1\ns_cmp_lt_u32 s57, 2\ns_cbranch_scc1 L_att")
    stamp(5)
    e(f"""v_add_f32 v56, v56, v57
          v_add_f32 v58, v58, v59
          v_add_f32 v56, v56, v58
          v_rcp_f32 v57, v56
          v_log_f32 v56, v56""")
    for i in range(6): e(f"v_mov_b32 v{REC+4*i+3}, {sT}")
    e(f"v_mov_b32 v{REC+22}, s37\nv_add_f32 v{REC+21}, v{vM}, v56")
    for t in range(4):
        for i in range(8): e(f"v_mul_f32 v{O+8*t+i}, v57, v{O+8*t+i}")
        for d in range(4):
            dst = REC + 4 * t + d if d < 3 else (REC + 16 + t if t < 3 else REC + 20)
            e(f"v_cvt_pk_bf16_f32 v{dst}, v{O+8*t+2*d}, v{O+8*t+2*d+1}")
        e(f"s_mov_b32 s50, {t * 4096}\nbuffer_store_dwordx4 v[{REC+4*t}:{REC+4*t+3}], v{vRS}, s[4:7], s50 offen sc1")
    for i in (4, 5):
        e(f"s_mov_b32 s50, {i * 4096}\nbuffer_store_dwordx4 v[{REC+4*i}:{REC+4*i+3}], v{vRS}, s[4:7], s50 offen sc1")
    stamp(6)
    vW2, vTk, vT16k = 8, 18, 22
    d9_addrs(None, vW2, 18432 - 4608, 2, 56)
    e(f"""s_lshr_b32 s50, {sU}, 2
          s_mul_i32 s50, s50, 144
          s_mul_i32 s51, {sX}, 576
          s_add_u32 s50, s50, s51
          s_lshl2_add_u32 s58, s39, s50
          s_mul_i32 s44, s58, 1152
          s_cmp_lg_u32 {sW}, 3
          s_cbranch_scc1 L_kv_nx1
          s_add_u32 s45, s44, {4 * 36864}
          s_mov_b32 s47, {4 * 9216}""")
    dma9(vW2, 16, "s45", "s47", 5)
    e(f"""s_branch L_kv_nx2
          L_kv_nx1:
          s_lshl4_add_u32 s50, {sX}, {sU}
          s_mul_i32 s50, s50, 6144
          s_lshl_b32 s51, {sW}, 11
          s_add_u32 s50, s50, s51
          s_add_u32 s59, s50, {WS_HM}
          v_and_b32 v56, 3, v1
          v_lshl_add_u32 v57, v2, 4, v56
          s_mul_i32 s50, {sW}, 48
          s_add_u32 s50, s50, s58
          v_add_lshl_u32 v57, v57, s50, 1
          buffer_load_ushort v58, v57, s[20:23], 0 offen
          s_mov_b32 s54, 0
          L_hm:
          buffer_load_dwordx4 v[64:67], v3, s[4:7], s59 offen sc1
          buffer_load_dwordx4 v[68:71], v3, s[4:7], s59 offen offset:1024 sc1
          s_add_u32 s54, s54, 1
          s_cmp_gt_u32 s54, {SPIN}
          s_cbranch_scc1 L_hm_done
          s_waitcnt vmcnt(0)
          v_bitop3_b32 v59, v67, v71, {sT} bitop3:0x7e
          v_cmp_ne_u32 vcc, 0, v59
          s_cbranch_vccnz L_hm
          L_hm_done:
          L_kv_nx2:""")
    stamp(14)
    e(f"""
          s_mul_i32 s50, {sW}, 36864
          s_add_u32 s44, s44, s50
          s_mul_i32 s47, {sW}, 9216""")
    dma9(vW2, 16, "s44", "s47")
    e(f"s_cmp_eq_u32 {sW}, 3\ns_cbranch_scc1 L_kv_nx3")
    red16(64, 0); red16(68, 0)
    c1 = -2 * math.sqrt(2 / math.pi) * math.log2(math.e)
    e(f"""v_and_b32 v59, 4, v1
          v_cmp_ne_u32 vcc, 0, v59
          v_lshlrev_b32 v58, 16, v58
          v_cndmask_b32 v64, v64, v68, vcc""")
    rbf("v64", "v64")
    e("v_add_f32 v64, v64, v58")
    rbf("v64", "v64")
    e(f"""v_mul_f32 v65, v64, v64
          v_mov_b32 v66, {f32(c1)}
          v_fmac_f32 v66, {f32(c1 * 0.044715)}, v65
          v_mul_f32 v65, v66, v64
          v_exp_f32 v65, v65
          v_add_f32 v65, 1.0, v65
          v_rcp_f32 v65, v65
          v_mul_f32 v64, v64, v65
          v_cvt_pk_bf16_f32 v64, v64, v64
          v_mul_u32_u24 v59, 32, v59              ; b*128
          v_lshl_add_u32 v59, v2, 3, v59
          v_lshl_add_u32 v59, v56, 1, v59
          s_mul_i32 s50, {sW}, 24
          s_add_u32 s50, s50, {HX}
          v_add_u32 v59, s50, v59
          s_mov_b32 exec_hi, 0xffff
          ds_write_b16 v59, v64
          s_mov_b32 exec_hi, -1
          L_kv_nx3:""")
    t9_addrs(vTk, vT16k, 0, 56)
    h5_store_addr(26, WS_H5M, 56)
    e(f"""v_bfe_u32 v27, v1, 2, 1
          v_lshlrev_b32 v27, 7, v27
          v_lshl_add_u32 v27, v2, 3, v27
          v_add_u32 v27, {HX}, v27
          s_waitcnt vmcnt(0) lgkmcnt(0)
          s_barrier""")
    stamp(15)
    gemv36(vTk, 0, vT16k, 27, 64, 120, 160, 26, 65536)
    stamp(7)
    e(f"""s_cmp_ge_u32 {sU}, 12
          s_cbranch_scc1 L_fin
          s_mul_i32 s44, {sX}, 12
          s_add_u32 s44, s44, {sU}                ; r
          s_lshr_b32 s50, s44, 3                  ; 3w+a
          s_mul_i32 s50, s50, 48
          s_and_b32 s51, s44, 3
          s_lshl2_add_u32 s50, s51, s50
          v_and_b32 v56, 3, v1
          v_lshl_add_u32 v57, v2, 4, v56
          v_add_lshl_u32 v57, v57, s50, 1
          s_bfe_u32 s51, s44, 0x10002
          s_mul_i32 s48, s51, 1152
          buffer_load_ushort v58, v57, s[24:27], 0 offen
          buffer_load_ushort v59, v57, s[28:31], s48 offen
          v_lshlrev_b32 v60, 4, v0
          s_lshl_b32 s45, s44, 13
          s_add_u32 s46, s45, {WS_H5M}
          s_add_u32 s47, s46, 4096
          v_lshl_add_u32 v61, v2, 2, v56
          v_lshlrev_b32 v61, 4, v61
          v_add_u32 v61, {FX}, v61
          s_lshl_b32 s50, {sW}, 2
          v_add_u32 v62, s50, v61
          s_mov_b32 s57, 0
          L_f_loop:
          s_mov_b32 s54, 0
          L_f_poll:
          buffer_load_dwordx4 v[64:67], v60, s[4:7], s46 offen sc1
          buffer_load_dwordx4 v[68:71], v60, s[4:7], s47 offen sc1
          s_add_u32 s54, s54, 1
          s_cmp_gt_u32 s54, {SPIN}
          s_cbranch_scc1 L_f_done
          s_waitcnt vmcnt(0)
          v_bitop3_b32 v63, v67, v71, {sT} bitop3:0x7e
          v_cmp_ne_u32 vcc, 0, v63
          s_and_b64 exec, exec, vcc
          s_cbranch_execnz L_f_poll
          L_f_done:
          s_mov_b64 exec, -1
          s_waitcnt vmcnt(0)
          v_add_f32 v64, v64, v68
          v_add_f32 v65, v65, v69
          v_add_f32 v66, v66, v70""")
    red16(64, 0)
    e(f"""ds_write_b32 v62, v64
          s_waitcnt lgkmcnt(0)
          s_barrier
          ds_read_b128 v[64:67], v61
          s_waitcnt lgkmcnt(0)
          v_add_f32 v64, v64, v65
          v_add_f32 v66, v66, v67
          v_add_f32 v64, v64, v66""")
    rbf("v64", "v64")
    e(f"""s_cmp_lg_u32 s57, 0
          s_cbranch_scc1 L_f_out
          v_lshlrev_b32 v58, 16, v58
          v_add_f32 v64, v64, v58""")
    rbf("v64", "v64")
    e(f"""v_mul_f32 v65, {f32(-math.log2(math.e))}, v64
          v_exp_f32 v65, v65
          v_add_f32 v65, 1.0, v65
          v_rcp_f32 v65, v65
          v_mul_f32 v58, v64, v65""")
    rbf("v58", "v58")
    e(f"""v_lshlrev_b32 v59, 16, v59
          v_add_u32 v61, 256, v61
          v_add_u32 v62, 256, v62
          s_add_u32 s46, s45, {WS_H5S}
          s_add_u32 s47, s46, 4096
          s_mov_b32 s57, 1""")
    stamp(8)
    e(f"""s_branch L_f_loop
          L_f_out:
          v_mul_f32 v64, v64, v58""")
    rbf("v64", "v64")
    e(f"""v_add_f32 v64, v59, v64
          v_cvt_pk_bf16_f32 v64, v64, v64
          s_cmp_lg_u32 {sW}, 0
          s_cbranch_scc1 L_fin
          s_mov_b32 exec_lo, 0x000f000f
          s_mov_b32 exec_hi, 0x0000000f
          buffer_store_short v64, v57, s[40:43], s48 offen
          s_mov_b64 exec, -1
          s_cmp_lg_u32 s44, 0
          s_cbranch_scc1 L_fin
          v_mov_b32 v65, {sT}
          v_mov_b32 v66, {WS_EPOCH}
          s_mov_b64 exec, 1
          buffer_store_dword v65, v66, s[4:7], 0 offen
          s_mov_b64 exec, -1""")
    e("L_fin:")
    if pad:
        role, k = pad
        if role == 2:
            e(f"""s_load_dwordx2 s[60:61], s[0:1], 96
                  s_mov_b32 s62, 256
                  s_mov_b32 s63, 0x20000
                  s_waitcnt lgkmcnt(0)
                  s_not_b32 s50, s64
                  v_mov_b32 v64, s50
                  v_mov_b32 v65, 0
                  s_mov_b64 exec, 1
                  buffer_atomic_umax v64, v65, s[60:63], 0 offen
                  s_add_u32 s50, s64, 3000
                  s_mov_b32 s54, 0
                  L_pad0:
                  s_add_u32 s54, s54, 1
                  s_cmp_gt_u32 s54, 100000
                  s_cbranch_scc1 L_end
                  s_memrealtime s[52:53]
                  s_waitcnt lgkmcnt(0)
                  s_sub_u32 s51, s52, s50
                  s_cmp_lt_i32 s51, 0
                  s_cbranch_scc1 L_pad0
                  buffer_load_dword v64, v65, s[60:63], 0 offen sc1
                  s_waitcnt vmcnt(0)
                  v_readfirstlane_b32 s64, v64
                  s_not_b32 s64, s64""")
        e(f"""s_waitcnt lgkmcnt(0)
              s_bfe_u32 s50, s2, 0x10003
              s_cmp_eq_u32 s50, {role}
              s_cselect_b32 s50, s{64 + 2 * k}, s64
              s_add_u32 s50, s50, 4000
              s_mov_b32 s54, 0
              L_pad:
              s_add_u32 s54, s54, 1
              s_cmp_gt_u32 s54, 100000
              s_cbranch_scc1 L_end
              s_memrealtime s[52:53]
              s_waitcnt lgkmcnt(0)
              s_sub_u32 s51, s52, s50
              s_cmp_lt_i32 s51, 0
              s_cbranch_scc1 L_pad""")
    if stamps:
        stamp(9)
        e("s_waitcnt lgkmcnt(0)")
        for k in range(16): e(f"v_mov_b32 v{64+k}, s{64 + 2 * k}")
        e(f"""s_lshl2_add_u32 s50, s2, {sW}
              s_lshl_b32 s50, s50, 6
              s_add_u32 s50, s50, {STAMP_OFF}
              v_mov_b32 v63, 0
              s_mov_b64 exec, 1
              buffer_store_dwordx4 v[64:67], v63, s[4:7], s50 offen
              buffer_store_dwordx4 v[68:71], v63, s[4:7], s50 offen offset:16
              buffer_store_dwordx4 v[72:75], v63, s[4:7], s50 offen offset:32
              buffer_store_dwordx4 v[76:79], v63, s[4:7], s50 offen offset:48""")
    e("L_end:\ns_endpgm")
    head = f"""; Persistent single-launch kernel: absorbed-MLA decode attention + channel MLP (generated by gen/gen1.py)
; @launch grid=(256,1,1) block=(256,1,1) lds=163840
.amdgcn_target "amdgcn-amd-amdhsa--gfx950"
.text
.globl {K}
.p2align 8
.type {K},@function
"""
    tail = f""".section .rodata,"a"
.p2align 6
.amdhsa_kernel {K}
  .amdhsa_next_free_vgpr 512
  .amdhsa_next_free_sgpr 96
  .amdhsa_accum_offset 256
  .amdhsa_group_segment_fixed_size 0
  .amdhsa_kernarg_size 112
  .amdhsa_user_sgpr_count 2
  .amdhsa_user_sgpr_kernarg_segment_ptr 1
  .amdhsa_system_sgpr_workgroup_id_x 1
.end_amdhsa_kernel
"""
    return head + e.text() + tail

if __name__ == "__main__":
    out = sys.argv[1]
    kw = {}
    for a in sys.argv[2:]:
        k, v = a.split("=")
        kw[k] = eval(v)
    open(out, "w").write(gen(**kw))
```

```python
import re

TRANS = ("v_exp_f32", "v_log_f32", "v_rcp_f32", "v_rsq_f32", "v_sqrt_f32", "v_sin_f32", "v_cos_f32")

def regs_of(tok):
    tok = tok.strip()
    neg = tok.lstrip("-")
    m = re.fullmatch(r"abs\((.*)\)", neg)
    if m: neg = m.group(1)
    m = re.fullmatch(r"\|(.*)\|", neg)
    if m: neg = m.group(1)
    m = re.fullmatch(r"([vas])(\d+)", neg)
    if m: return {(m.group(1), int(m.group(2)))}
    m = re.fullmatch(r"([vas])\[(\d+):(\d+)\]", neg)
    if m: return {(m.group(1), i) for i in range(int(m.group(2)), int(m.group(3)) + 1)}
    if neg in ("vcc", "vcc_lo", "vcc_hi"): return {("s", "vcc")}
    if neg in ("exec", "exec_lo", "exec_hi"): return {("s", "exec")}
    if neg == "m0": return {("s", "m0")}
    return set()

class Ins:
    def __init__(self, text):
        self.text = text
        t = text.split(";")[0].strip()
        self.label = t.endswith(":")
        self.directive = t.startswith(".") and not self.label
        self.empty = (t == "")
        self.op = ""; self.defs = set(); self.uses = set(); self.cls = None
        self.A = self.B = self.C = set(); self.states = 0
        if self.label or self.directive or self.empty: return
        parts = t.split(None, 1)
        self.op = op = parts[0]
        rest = parts[1] if len(parts) > 1 else ""
        ops = [o.strip() for o in re.split(r",(?![^\[]*\])", rest)] if rest else []
        mods = ""
        if ops:
            sp = ops[-1].split(None, 1)
            if len(sp) > 1: ops[-1], mods = sp[0], sp[1]
        self.ops = ops; self.mods = mods
        R = [regs_of(o) for o in ops]
        self.states = 1
        if op == "s_nop": self.states = int(ops[0], 0) + 1; self.cls = "salu"; return
        if op.startswith("v_mfma") or op.startswith("v_smfmac"):
            self.cls = "mfma"; self.defs = R[0]; self.A, self.B = R[1], R[2]
            if op.startswith("v_smfmac"):
                self.C = R[0]; self.B = self.B | R[3]
            else: self.C = R[3]
            self.uses = self.A | self.B | self.C
            self.passes = 8 if "32x32" in op else 4
            if "smfmac" in op: self.passes = 8
        elif op.startswith("v_"):
            self.cls = "valu"
            self.defs = set(R[0]); self.uses = set().union(*R[1:]) if len(R) > 1 else set()
            if "permlane" in op and "swap" in op: self.defs = R[0] | R[1]; self.uses = R[0] | R[1]
            if op.startswith(("v_fmac", "v_pk_fmac", "v_dot2c", "v_writelane")): self.uses |= R[0]
            if "_co_" in op: self.defs |= R[1]
            if op.startswith("v_cmpx"): self.defs |= {("s", "exec")}
            self.dpp = "_dpp" in op or "row_" in mods or "quad_perm" in mods
            self.trans = op.replace("_e32", "").replace("_e64", "") in TRANS
        elif op.startswith("ds_"):
            self.cls = "ds"
            if op.startswith(("ds_read", "ds_bpermute", "ds_permute", "ds_swizzle")):
                self.defs = R[0]; self.uses = set().union(*R[1:])
            else: self.uses = set().union(*R)
        elif op.startswith(("buffer_", "global_")):
            self.cls = "vmem"
            self.lds = bool(re.search(r"\blds\b", mods)) or "load_lds" in op
            if "load" in op and not self.lds:
                self.defs = R[0]; self.uses = set().union(*R[1:])
            else: self.uses = set().union(*R)
            if self.lds: self.uses |= {("s", "m0")}
            self.widestore = "store" in op and op.endswith(("x3", "x4"))
            self.data = R[0] if "store" in op else set()
        elif op.startswith("s_"):
            self.cls = "salu"
            if op.startswith(("s_cmp", "s_cbranch", "s_branch", "s_waitcnt", "s_barrier", "s_endpgm", "s_setprio", "s_sleep", "s_bitcmp")):
                self.uses = set().union(*R) if R else set()
            else:
                self.defs = set(R[0]) if R else set(); self.uses = set().union(*R[1:]) if len(R) > 1 else set()
                if "saveexec" in op: self.defs |= {("s", "exec")}
        else:
            raise ValueError("unknown op " + text)

def vec(s): return {r for r in s if r[0] in "va"}
def sca(s): return {r for r in s if r[0] == "s"}

def need(p, c):
    n = 0
    if p.cls == "valu":
        pv = vec(p.defs); ps = sca(p.defs)
        if c.cls == "mfma" and pv & c.uses: n = max(n, 2)
        if c.cls == "mfma" and ("s", "exec") in ps: n = max(n, 4)
        if c.cls == "valu":
            if pv & c.uses:
                if "permlane" in c.op: n = max(n, 2)
                if c.dpp: n = max(n, 2)
                if c.op.startswith(("v_readlane", "v_readfirstlane")): n = max(n, 1)
                if p.trans and not c.trans: n = max(n, 1)
                if p.trans and c.trans: n = max(n, 1)
            if ps & c.uses:
                n = max(n, 4 if c.op.startswith(("v_readlane", "v_writelane")) else 2)
        if c.cls == "vmem" and ps & c.uses: n = max(n, 5)
        if c.cls == "salu" and ps & c.uses: n = max(n, 1)
    if p.cls == "mfma":
        big = {4: 8, 8: 12}[p.passes]; part = {4: 6, 8: 10}[p.passes]; war = {4: 3, 8: 7}[p.passes]
        if c.cls == "mfma":
            if p.defs & (c.A | c.B): n = max(n, big)
            if p.defs & c.C:
                if not (p.defs == c.C and p.passes == c.passes and p.op == c.op): n = max(n, part)
            elif p.defs & c.defs: n = max(n, big)
        elif c.cls in ("valu", "ds", "vmem"):
            if p.defs & (c.uses | c.defs): n = max(n, big)
            if c.cls == "valu" and p.C & c.defs: n = max(n, war)
    if p.cls == "salu" and ("s", "m0") in p.defs and c.cls == "vmem" and c.lds: n = max(n, 1)
    if p.cls == "vmem" and getattr(p, "widestore", False) and c.cls in ("valu", "mfma") and p.data & c.defs: n = max(n, 2)
    if p.cls == "vmem" and getattr(p, "widestore", False) and c.cls in ("ds", "vmem") and p.data & c.defs: n = max(n, 1)
    return n

class Asm:
    def __init__(self):
        self.ins = []
        self.padded = 0
        self.dsq = []
        self.auto = False
    def wds(self, regs):
        last = -1
        for i, d in enumerate(self.dsq):
            if d & regs: last = i
        if last >= 0:
            n = min(15, len(self.dsq) - 1 - last)
            self.emit(f"s_waitcnt lgkmcnt({n})")
    def __call__(self, text):
        for line in text.split("\n"):
            line = line.strip()
            if not line: continue
            self.emit(line)
    def emit(self, line):
        c = Ins(line)
        if self.auto and c.cls in ("valu", "mfma", "vmem", "ds"):
            self.wds(vec(c.uses) | (vec(c.defs) if c.cls != "ds" else set()))
        if c.cls == "ds": self.dsq.append(set(c.defs))
        if c.op == "s_waitcnt":
            m = re.search(r"lgkmcnt\((\d+)\)", c.text)
            if m:
                n = int(m.group(1))
                self.dsq = self.dsq[len(self.dsq) - n:] if n and n < len(self.dsq) else ([] if n == 0 else self.dsq)
        if c.cls:
            dist = 0; req = 0
            for p in reversed(self.ins):
                if not p.cls: continue
                if p.op in ("s_branch", "s_endpgm", "s_setpc_b64"): break
                k = need(p, c) - dist
                if k > req: req = k
                dist += p.states
                if dist >= 20: break
            if req > 0:
                self.ins.append(Ins(f"s_nop {req - 1}")); self.padded += req
        self.ins.append(c)
    def text(self):
        out = []
        for i in self.ins:
            out.append(i.text if (i.label or i.directive) else "    " + i.text)
        return "\n".join(out) + "\n"

def weave(main, side, every=1, start=0, per=1):
    out = []; side = list(side)
    for i, m in enumerate(main):
        out.append(m)
        if i >= start and (i - start) % every == 0:
            for _ in range(per):
                if side: out.append(side.pop(0))
    return out + side
```

```python
import sys, math, struct
from asmlib import Asm, weave

NAME = "recurrent_scan__compressed_kv_cla__mixer_channel_mlp__decode"
K = NAME + "_kernel"
WS_BYTES = 268435456
SPIN = 1 << 17
def f32(x): return "0x%08x" % struct.unpack("<I", struct.pack("<f", x))[0]

def gen(stamps=False, wsb=0, touch_uk=True, nt="", ntv="", pad=None, codepf=True, pretouch=True):
    WS_EPOCH = wsb
    WS_Q = wsb + 4096
    WS_FL = wsb + 0x30000
    WS_H3 = wsb + 0x60000
    WS_HM = WS_H3 + 128 * 16384
    WS_H5M = WS_HM + 128 * 6144
    WS_H5S = WS_H5M + 96 * 8192
    STAMP_OFF = 255 << 20
    e = Asm()
    def E(lst):
        for x in lst: e(x)
    def stamp(k):
        if stamps or (pad and (k == 0 or k == pad[1])): e(f"s_memrealtime s[{64 + 2 * k}:{65 + 2 * k}]")
    def srd(n, size): e(f"s_mov_b32 s{n + 2}, {size}\ns_mov_b32 s{n + 3}, 0x20000")
    sX, sU, sW, sT = "s3", "s33", "s34", "s36"
    TP = "s[36:37]"
    def rbf(dst, src): e(f"v_cvt_pk_bf16_f32 {dst}, {src}, {src}\nv_and_b32 {dst}, 0xffff0000, {dst}")
    def mf(d, a, b, c, op="v_mfma_f32_16x16x32_bf16", n=4):
        def r(x, k): return f"{x[0]}[{x[1]}:{x[1] + k - 1}]"
        return f"{op} {r(d, 4)}, {r(a, n)}, {r(b, n)}, " + ("0" if c is None else r(c, 4))
    def load_epoch():
        e(f"s_load_dword s35, s[4:5], {WS_EPOCH}" if WS_EPOCH < (1 << 20) else f"s_mov_b32 s51, {WS_EPOCH}\ns_load_dword s35, s[4:5], s51")
    def make_tag():
        e("s_mul_i32 s36, s35, 0x41c64e6d\ns_add_u32 s36, s36, 0x3c6ef35f\ns_mul_i32 s37, s36, 0x2c9277b5\ns_add_u32 s37, s37, 0xac564b05")
    def red16(v0):
        e(f"""v_permlane32_swap_b32 v{v0}, v{v0+2}
              v_permlane32_swap_b32 v{v0+1}, v{v0+3}
              v_add_f32 v{v0}, v{v0}, v{v0+2}
              v_add_f32 v{v0+1}, v{v0+1}, v{v0+3}
              v_permlane16_swap_b32 v{v0}, v{v0+1}
              v_add_f32 v{v0}, v{v0}, v{v0+1}
              v_add_f32_dpp v{v0}, v{v0}, v{v0} row_ror:4 row_mask:0xf bank_mask:0xf
              v_add_f32_dpp v{v0}, v{v0}, v{v0} row_ror:8 row_mask:0xf bank_mask:0xf""")
    def d9_addrs(vlin, vrow_out, mul, shift, vt):
        e(f"v_lshrrev_b32 v{vt}, 3, v1\nv_mul_u32_u24 v{vt}, 57, v{vt}\ns_mov_b32 s50, {mul}")
        for i in range(9):
            dst = vlin + i if vlin is not None else vt + 3
            e(f"""v_add_u32 v{vt+2}, {8 * 57 * i}, v{vt}
                  v_lshrrev_b32 v{vt+3}, 5, v{vt+2}
                  v_and_b32 v{vt+3}, 0x60, v{vt+3}
                  v_lshrrev_b32 v{vt+2}, {9 + shift}, v{vt+2}""")
            if (i >> 2): e(f"s_movk_i32 s51, {(i >> 2) * 4096}\nv_xad_u32 v{dst}, v{vt+3}, v3, s51")
            else: e(f"v_xor_b32 v{dst}, v{vt+3}, v3")
            e(f"v_mad_u32_u24 v{vrow_out + i}, v{vt+2}, s50, v{dst}")
    def dma9(va, srdn, soff, m0, n=9, fl=None):
        fl = ntv if fl is None else fl
        out = []
        for i in range(n):
            pre = f"s_mov_b32 m0, {m0}\n" if i == 0 else ("s_add_u32 m0, m0, 4096\n" if i % 4 == 0 else "")
            off = f" offset:{(i & 3) * 1024}" if i & 3 else ""
            out.append(pre + f"buffer_load_dwordx4 v{va + i}, s[{srdn}:{srdn+3}], {soff} offen{off} {fl} lds")
        return out
    def t9_addrs(vT, vT16, base16, vt):
        e(f"""v_lshrrev_b32 v{vt}, 2, v1            ; 4g+r
              v_bfe_u32 v{vt+1}, v1, 3, 2            ; sw = 2(g&1)+(r>>1)
              v_and_b32 v{vt+2}, 3, v1
              v_lshlrev_b32 v{vt+2}, 3, v{vt+2}      ; 8*(l&3)
              s_movk_i32 s50, 1152
              v_mad_u32_u24 v{vt+3}, v{vt}, s50, v{vt+2}
              v_and_b32 v{vt}, 3, v{vt}              ; r
              v_mad_u32_u24 v{vt+4}, v{vt}, s50, v{vt+2}
              v_add_u32 v{vt+4}, {base16 + 32 * 1152}, v{vt+4}
              v_lshrrev_b32 v{vt}, 1, v{vt}          ; r>>1
              s_mul_i32 s50, {sW}, 9""")
        for m in range(4):
            e(f"""v_xor_b32 v{vt+2}, s50, v{vt+1}
                  v_lshl_add_u32 v{vT+m}, v{vt+2}, 5, v{vt+3}
                  v_xor_b32 v{vt+2}, s50, v{vt}
                  v_lshl_add_u32 v{vT16+m}, v{vt+2}, 5, v{vt+4}""")
            if m < 3: e("s_add_u32 s50, s50, 1")
    def gemv36(vT, off, vT16, vact, vact16, vfr, vacc, vrec, vst, astride, side=()):
        rd = [f"ds_read2_b64 v[{vrec}:{vrec+3}], v{vact} offset1:4", f"ds_read_b64 v[{vrec+4}:{vrec+5}], v{vact16} offset:64"]
        for t in range(9):
            m, z = t & 3, t >> 2
            rd.append(f"ds_read_b64_tr_b16 v[{vfr+6*t}:{vfr+6*t+1}], v{vT+m} offset:{off + z * 128}")
            rd.append(f"ds_read_b64_tr_b16 v[{vfr+6*t+2}:{vfr+6*t+3}], v{vT+m} offset:{off + 18432 + z * 128}")
        for t in range(9):
            m, z = t & 3, t >> 2
            rd.append(f"ds_read_b64_tr_b16 v[{vfr+6*t+4}:{vfr+6*t+5}], v{vT16+m} offset:{z * 128}")
        rd.append(f"v_cmp_gt_u32 vcc, 16, v1\nv_cndmask_b32 v{vrec+4}, 0, v{vrec+4}, vcc\nv_cndmask_b32 v{vrec+5}, 0, v{vrec+5}, vcc")
        for t in range(9): rd.append(mf(("v", vacc + 4 * t), ("v", vrec), ("v", vfr + 6 * t), None))
        for t in range(9): rd.append(mf(("v", vacc + 4 * t), ("v", vrec + 4), ("v", vfr + 6 * t + 4), ("v", vacc + 4 * t), "v_mfma_f32_16x16x16_bf16", 2))
        e.auto = True
        E(weave(rd, side, every=2))
        e.auto = False
        e("s_mov_b32 exec_hi, 0")
        for a in range(3):
            g = vrec + 8 + 4 * a
            for t in range(3): e(f"v_mov_b32 v{g+t}, v{vacc + 4 * (3 * a + t)}")
            e(f"v_mov_b32 v{g+3}, {sT}\ns_mov_b32 s50, {a * astride}")
            e(f"buffer_store_dwordx4 v[{g}:{g+3}], v{vst}, s[4:7], s50 offen sc1")
        e("s_mov_b32 exec_hi, -1")
    def h5_store_addr(vst, base, vt):
        e(f"""v_bfe_u32 v{vt}, v1, 2, 3              ; b*4+q
              v_and_b32 v{vt+1}, 48, v3
              v_lshl_add_u32 v{vt}, v{vt}, 13, v{vt+1}
              s_mul_i32 s50, {sW}, {24 * 8192}
              s_lshl4_add_u32 s51, {sX}, {sU}
              s_lshl_b32 s51, s51, 6
              s_add_u32 s50, s50, s51
              s_add_u32 s50, s50, {base}
              v_add_u32 v{vst}, s50, v{vt}""")

    e(f"{K}:")
    stamp(0)
    e(f"""s_load_dwordx2 s[4:5], s[0:1], 104
          s_load_dwordx2 s[12:13], s[0:1], 24
          s_load_dwordx2 s[28:29], s[0:1], 0
          s_cmp_ge_u32 s2, 256
          s_cbranch_scc1 L_end
          v_lshrrev_b32 v2, 6, v0
          v_and_b32 v1, 63, v0
          s_and_b32 {sX}, s2, 7
          v_readfirstlane_b32 {sW}, v2
          s_lshr_b32 {sU}, s2, 4""")
    if codepf:
        e(f"""s_getpc_b64 s[60:61]
              s_lshr_b32 s50, s2, 3
              s_lshl2_add_u32 s50, s50, {sW}
              s_lshl_b32 s50, s50, 7
              s_min_u32 s50, s50, L_end-{K}-128
              v_mov_b32 v6, s50
              global_load_dword v6, v6, s[60:61]""")
    e(f"""v_lshlrev_b32 v3, 4, v1
          v_lshrrev_b32 v2, 4, v1                 ; g
          s_lshr_b32 s38, {sU}, 2
          s_lshl2_add_u32 s38, {sX}, s38
          s_and_b32 s39, {sU}, 3                  ; j
          s_mov_b32 s11, 0x20000""")
    NPF = 1 if codepf else 0
    e("s_bitcmp1_b32 s2, 3\ns_cbranch_scc1 L_qv")

    QX, PX, MX, HX, FX = 131072, 147456, 155648, 155904, 156160
    vDA = 8
    e(f"""s_load_dwordx2 s[8:9], s[0:1], 8
          s_lshr_b32 s48, {sU}, 1
          s_lshl3_add_u32 s48, {sX}, s48          ; cidx
          s_and_b32 s49, {sU}, 1                  ; hh
          s_lshl1_add_u32 s50, s48, s49
          s_lshl3_add_u32 s50, s50, {sW}
          s_lshl_b32 s44, s50, 14
          s_lshl_b32 s46, {sW}, 15
          s_mov_b32 s10, {2 * 8192 * 1024}""")
    FT = [2 * ((r & 7) ^ (4 * (r >> 3))) + (r >> 3) for r in range(16)]
    if touch_uk:
        srd(12, 512 * 8192)
        e(f"""v_lshrrev_b32 v4, 1, v0
              v_and_b32 v5, 1, v0
              v_lshlrev_b32 v4, 13, v4
              v_lshl_add_u32 v4, v5, 7, v4
              s_lshl_b32 s50, s39, 20
              s_lshl_b32 s51, s38, 8
              s_add_u32 s50, s50, s51
              s_waitcnt lgkmcnt(0)
              buffer_load_dword v5, v4, s[12:15], s50 offen {nt}""")
    for r in range(16): e(f"v_xor_b32 v{vDA + r}, {FT[r] * 16 + (r >> 2) * 4096}, v3")
    if not touch_uk: e("s_waitcnt lgkmcnt(0)")
    def slot_dma(soff, m0expr):
        out = []
        for r in range(16):
            pre = m0expr + "\n" if r == 0 else ("s_add_u32 m0, m0, 4096\n" if r % 4 == 0 else "")
            off = f" offset:{(r & 3) * 1024}" if r & 3 else ""
            out.append(pre + f"buffer_load_dwordx4 v{vDA + r}, s[8:11], {soff} offen{off} {nt} lds")
        return out
    stamp(10)
    s0 = slot_dma("s44", "s_mov_b32 m0, s46")
    NEARLY = 4 if touch_uk else 8
    E(s0[:NEARLY])
    load_epoch()
    e("s_branch L_kv2")

    R0, R1, R2, R3 = 0, 36864, 73728, 110592
    XN, YN, QQ, CX = 152576, 157184, 159488, 160000
    vDQ, vTR = 4, 8
    e("L_qv:")
    e(f"""s_load_dwordx2 s[8:9], s[0:1], 16
          s_and_b32 s50, {sW}, 1
          s_lshl_b32 s50, s50, 3
          v_lshl_add_u32 v7, v2, 1, s50
          v_xor_b32 v7, v7, v1
          v_and_b32 v7, 15, v7
          v_lshlrev_b32 v7, 4, v7
          v_lshl_add_u32 v7, v2, 13, v7
          s_lshl_b32 s50, {sW}, 7
          s_add_u32 s50, s50, s38
          s_lshl_b32 s50, s50, 8
          v_add_u32 v{vDQ}, s50, v7
          v_add_u32 v{vDQ+1}, {131072 - 1024}, v{vDQ}
          s_mul_i32 s48, s39, 9
          s_add_u32 s48, s48, 1
          s_lshr_b32 s48, s48, 1
          s_lshl_b32 s44, s48, 18
          s_lshl_b32 s46, {sW}, 11
          s_mov_b32 s10, {576 * 8192}
          v_mul_u32_u24 v16, 36, v1               ; b*1152 + i*36""")
    srd(28, 2304)
    e(f"""s_mov_b32 s47, s46
          s_mov_b32 s45, {4 * 8192}
          s_cmp_lg_u32 {sW}, 0
          s_waitcnt lgkmcnt(0)
          s_cbranch_scc1 L_qv_ld
          buffer_load_dwordx3 v[20:22], v16, s[28:31], 0 offen
          buffer_load_dwordx3 v[24:26], v16, s[28:31], 0 offen offset:12
          buffer_load_dwordx3 v[28:30], v16, s[28:31], 0 offen offset:24
          L_qv_ld:
          s_mov_b32 m0, s47
          s_add_u32 s47, s47, 8192
          buffer_load_dwordx4 v{vDQ}, s[8:11], s44 offen {nt} lds
          buffer_load_dwordx4 v{vDQ+1}, s[8:11], s44 offen offset:1024 {nt} lds
          s_add_u32 s44, s44, 0x40000
          s_cmp_eq_u32 s44, {18 << 18}
          s_cselect_b32 s44, 0, s44
          s_cmp_lt_u32 s47, s45
          s_cbranch_scc1 L_qv_ld
          s_cmp_eq_u32 s45, {18 * 8192}
          s_cbranch_scc1 L_qv2
          s_cmp_eq_u32 s45, {5 * 8192}
          s_cbranch_scc1 L_ln""")
    stamp(12)
    load_epoch()
    e("""s_load_dwordx2 s[16:17], s[0:1], 40
         s_load_dwordx2 s[20:21], s[0:1], 32
         s_load_dwordx2 s[24:25], s[0:1], 56""")
    srd(4, WS_BYTES); srd(12, 512 * 8192); srd(16, 4096 * 1152); srd(20, 512 * 8192); srd(24, 576 * 9216)
    vUKA, vQ0, vXF, vQW, vQR, vQS = 7, 200, 206, 207, 208, 209
    vL, vW1, vT, vT2, vT16 = 180, 190, 212, 216, 220
    vY, vY16, vHM, vH3, vFL, vBP, vCW, vCR, vS5 = 224, 225, 226, 227, 228, 229, 230, 231, 232
    e(f"""v_bfe_u32 v17, v1, 2, 2                 ; (l&15)>>2
          v_and_b32 v18, 3, v1
          v_lshl_add_u32 v19, v17, 3, v18
          v_lshlrev_b32 v19, 13, v19
          v_lshl_add_u32 v{vUKA}, v2, 4, v19
          v_bfe_u32 v19, v1, 2, 3
          v_lshlrev_b32 v19, 5, v19
          v_lshl_add_u32 v19, v18, 3, v19
          v_lshl_add_u32 v19, v17, 8, v19
          v_lshl_add_u32 v19, v2, 11, v19
          s_lshl_b32 s50, {sW}, 6
          v_xor_b32 v{vQ0}, s50, v19
          v_xor_b32 v{vQ0+1}, 32, v{vQ0}
          v_add_u32 v{vQ0+2}, 0x10000, v{vQ0}
          v_add_u32 v{vQ0+3}, 0x10000, v{vQ0+1}
          v_add_u32 v{vQ0+4}, 0x20000, v{vQ0}
          v_add_u32 v{vQ0+5}, 0x20000, v{vQ0+1}
          v_add_u32 v{vTR}, {R2}, v19""")
    for ct in range(1, 8): e(f"v_xor_b32 v{vTR + ct}, {32 * ct}, v{vTR}")
    e(f"""v_and_b32 v23, 1, v1
          v_mul_u32_u24 v19, 2304, v23
          v_lshl_add_u32 v19, v2, 3, v19
          s_lshl_b32 s51, s48, 6
          s_add_u32 s51, s51, {XN}
          v_add_u32 v{vXF}, s51, v19
          v_lshlrev_b32 v19, 8, v23
          v_lshl_add_u32 v27, v2, 4, v19
          v_add_u32 v{vQR}, {QQ}, v27
          v_lshl_add_u32 v19, v2, 3, v19
          s_add_u32 s50, s50, {QQ}
          v_add_u32 v{vQW}, s50, v19
          v_lshlrev_b32 v19, 16, v23
          v_lshl_add_u32 v19, v2, 4, v19
          s_lshr_b32 s55, s38, 4
          s_lshl2_add_u32 s55, s55, s39           ; hh*4+j
          s_lshl2_add_u32 s50, s55, {sW}
          s_lshl_b32 s50, s50, 5
          s_and_b32 s56, s38, 15
          s_add_u32 s50, s50, s56
          s_lshl_b32 s50, s50, 6
          s_add_u32 s50, s50, {WS_Q}
          v_add_u32 v{vQS}, s50, v19
          v_bfe_u32 v19, v1, 2, 1
          v_mul_u32_u24 v27, 1152, v19
          s_mul_i32 s50, {sU}, 72
          s_add_u32 s50, s50, {YN}
          v_add_u32 v{vY16}, s50, v27
          v_lshl_add_u32 v{vY}, v2, 3, v{vY16}
          v_lshl_add_u32 v19, v19, 1, v23
          v_lshlrev_b32 v19, 8, v19
          v_lshl_add_u32 v19, v2, 3, v19
          v_add_u32 v{vCR}, {CX}, v19
          v_mul_u32_u24 v19, 6144, v17
          v_lshl_add_u32 v19, v2, 10, v19
          v_lshl_add_u32 v19, v18, 4, v19
          s_lshl2_add_u32 s50, {sX}, {sW}
          s_mul_i32 s50, s50, {4 * 6144}
          s_lshl_b32 s51, {sU}, 6
          s_add_u32 s50, s50, s51
          s_add_u32 s50, s50, {WS_HM}
          v_add_u32 v{vHM}, s50, v19
          v_and_b32 v18, 15, v1
          v_lshlrev_b32 v{vBP}, 4, v2
          v_lshl_add_u32 v19, v18, 6, v{vBP}
          s_lshl2_add_u32 s50, s38, s39
          s_lshl4_add_u32 s50, s50, {sW}
          s_lshl_b32 s50, s50, 10
          s_add_u32 s50, s50, {WS_H3}
          v_add_u32 v{vH3}, s50, v19
          s_lshl_b32 s50, {sW}, 4
          v_and_b32 v19, 31, v1
          v_xor_b32 v19, s50, v19
          v_lshlrev_b32 v19, 8, v19
          s_lshl_b32 s50, s55, 14
          s_lshl4_add_u32 s50, s56, s50
          s_add_u32 s50, s50, {WS_FL}
          v_add_u32 v{vFL}, s50, v19
          v_xor_b32 v19, s39, v2
          v_lshlrev_b32 v19, 6, v19
          v_lshl_add_u32 v19, v18, 1, v19
          s_lshl_b32 s50, {sW}, 8
          s_add_u32 s50, s50, {CX}
          v_add_u32 v{vCW}, s50, v19""")
    h5_store_addr(vS5, WS_H5S, 18)
    d9_addrs(vL, vW1, 9216 - 1152, 0, 32)
    t9_addrs(vT, vT16, R3, 32)
    for m in range(4): e(f"v_add_u32 v{vT2+m}, {R2}, v{vT+m}")
    e("s_waitcnt lgkmcnt(0)")
    make_tag()
    e(f"""v_mov_b32 v80, s36
          v_mov_b32 v81, s37
          v_mov_b32 v86, s36
          v_mov_b32 v87, s37
          s_mov_b32 s45, {5 * 8192}
          s_branch L_qv_ld""")
    e(f"L_ln:\ns_mov_b32 s45, {18 * 8192}\ns_cmp_lg_u32 {sW}, 0\ns_cbranch_scc1 L_qv_ld")
    xs = [20, 21, 22, 24, 25, 26, 28, 29, 30]
    F = 40
    e(f"""v_lshrrev_b32 v17, 5, v1
          v_mul_u32_u24 v17, 1152, v17
          v_add_u32 v17, v17, v16
          v_add_u32 v17, {XN}, v17
          s_mov_b32 s51, 0
          s_waitcnt vmcnt(10)""")
    stamp(10)
    e("L_ln_loop:")
    def P(i): return f"v[{F+2*i}:{F+2*i+1}]"
    def unpack(i): return f"v_lshlrev_b32 v{F+2*i}, 16, v{xs[i]}\nv_and_b32 v{F+2*i+1}, 0xffff0000, v{xs[i]}"
    def allred32(v, t):
        return [f"v_add_f32_dpp v{v}, v{v}, v{v} row_ror:{s_} row_mask:0xf bank_mask:0xf" for s_ in (8, 4, 2, 1)] + \
               [f"v_mov_b32 v{t}, v{v}", f"v_permlane16_swap_b32 v{v}, v{t}\nv_add_f32 v{v}, v{v}, v{t}"]
    for i in range(9): e(unpack(i))
    e(f"v_pk_add_f32 v[18:19], {P(0)}, {P(1)}")
    for i in range(2, 9): e(f"v_pk_add_f32 v[18:19], v[18:19], {P(i)}")
    e("v_add_f32 v18, v18, v19")
    E(allred32(18, 19))
    e(f"v_mul_f32 v23, {f32(1 / 576)}, v18")
    rbf("v18", "v23")
    e("v_sub_f32 v23, v23, v18")
    for i in range(9): e(f"v_pk_add_f32 {P(i)}, {P(i)}, v[18:19] op_sel_hi:[1,0] neg_lo:[0,1] neg_hi:[0,1]")
    e(f"v_pk_mul_f32 v[18:19], {P(0)}, {P(0)}")
    for i in range(1, 9): e(f"v_pk_fma_f32 v[18:19], {P(i)}, {P(i)}, v[18:19]")
    e("v_add_f32 v18, v18, v19")
    fill = [f"v_cvt_pk_bf16_f32 v{xs[i]}, v{F+2*i}, v{F+2*i+1}\n" + unpack(i) for i in range(9)]
    tail = allred32(18, 19) + [f"v_mul_f32 v18, {f32(1 / 576)}, v18\nv_fma_f32 v18, -v23, v23, v18\nv_cvt_pk_bf16_f32 v18, v18, v18\nv_and_b32 v18, 0xffff0000, v18\nv_add_f32 v18, {f32(1e-5)}, v18\nv_cvt_pk_bf16_f32 v18, v18, v18\nv_and_b32 v18, 0xffff0000, v18\nv_sqrt_f32 v18, v18",
                               "v_cvt_pk_bf16_f32 v18, v18, v18\nv_and_b32 v18, 0xffff0000, v18\nv_rcp_f32 v18, v18"]
    E(weave(fill, tail))
    for i in range(9):
        e(f"v_pk_mul_f32 {P(i)}, {P(i)}, v[18:19] op_sel_hi:[1,0]\nv_cvt_pk_bf16_f32 v{xs[i]}, v{F+2*i}, v{F+2*i+1}")
    def xwrite(a):
        for i in range(0, 8, 2): e(f"ds_write2_b32 v{a}, v{xs[i]}, v{xs[i+1]} offset0:{i} offset1:{i+1}")
        e(f"ds_write_b32 v{a}, v{xs[8]} offset:32")
    xwrite(17)
    stamp(11)
    e(f"s_cmp_lg_u32 s51, 0\ns_cbranch_scc1 L_qv_ld\nv_add_u32 v19, 1152, v17")
    xwrite(19)
    e(f"v_add_u32 v17, {YN}, v16\ns_mov_b32 s51, 1\ns_branch L_ln_loop")

    e("L_qv2:")
    e.dsq = []
    vUK = 32
    e(f"""s_lshl2_add_u32 s50, s39, {sW}
          s_lshl_b32 s50, s50, 10
          s_add_u32 s50, s50, s38
          s_lshl_b32 s50, s50, 8
          s_add_u32 s51, s50, 0x8000""")
    for ee in range(2):
        for k in range(4):
            r = vUK + (ee * 4 + k) * 4
            e(f"buffer_load_dwordx4 v[{r}:{r+3}], v{vUKA}, s[12:15], s{50 + ee} offen offset:{k * 64}")
    stamp(1)
    aXN, aWQ = 0, 72
    phases = [(0, 12, 20), (12, 15, 14), (15, 18, 8)]
    e.auto = True
    for pi, (s0_, s1_, vm) in enumerate(phases):
        e(f"s_waitcnt vmcnt({vm})" + (" lgkmcnt(0)" if pi == 0 else "") + "\ns_barrier")
        stamp(13 + pi)
        def mm(t):
            for c in range(2): e(mf(("v", 64 + 4 * c), ("a", aWQ + t * 8 + c * 4), ("a", aXN + 4 * t), None if t == 0 else ("v", 64 + 4 * c)))
        for sg in range(s0_, s1_):
            if pi == 0: e(f"ds_read2_b64 a[{aXN+4*sg}:{aXN+4*sg+3}], v{vXF} offset0:{8*sg} offset1:{8*sg+4}")
            for c in range(2):
                for u in range(2):
                    r = aWQ + sg * 8 + c * 4 + u * 2
                    e(f"ds_read_b64_tr_b16 a[{r}:{r+1}], v{vQ0 + 2 * (sg >> 3) + c} offset:{(sg & 7) * 8192 + u * 1024}")
            if sg - s0_ >= 2: mm(sg - 2)
        if pi == 0:
            for sg in range(12, 18): e(f"ds_read2_b64 a[{aXN+4*sg}:{aXN+4*sg+3}], v{vXF} offset0:{8*sg} offset1:{8*sg+4}")
        mm(s1_ - 2); mm(s1_ - 1)
    stamp(2)
    e(f"""v_cvt_pk_bf16_f32 v72, v64, v65
          v_cvt_pk_bf16_f32 v73, v66, v67
          v_cvt_pk_bf16_f32 v74, v68, v69
          v_cvt_pk_bf16_f32 v75, v70, v71
          ds_write2_b64 v{vQW}, v[72:73], v[74:75] offset1:4
          s_waitcnt lgkmcnt(0)
          s_barrier""")
    for k in range(4): e(f"ds_read_b128 v[{88+4*k}:{91+4*k}], v{vQR} offset:{64 * k}")
    e(f"s_mov_b32 s50, {f32(128 ** -0.5 * math.log2(math.e))}\ns_waitcnt vmcnt(0)")
    for k in range(4):
        for ee in range(2):
            e(mf(("v", 64 + 4 * ee), ("v", vUK + (ee * 4 + k) * 4), ("v", 88 + 4 * k), None if k == 0 else ("v", 64 + 4 * ee)))
    e.auto = False
    e(f"""s_mov_b32 exec_lo, 0x00030003
          s_mov_b32 exec_hi, 0x00030003
          s_lshl_b32 s44, s39, 20
          s_add_u32 s47, s46, {R2}""")
    for ee in range(2):
        for i in range(4): e(f"v_mul_f32 v{64+4*ee+i}, s50, v{64+4*ee+i}")
        for i in range(2): e(f"v_cvt_pk_bf16_f32 v{82+2*ee+i}, v{64+4*ee+2*i}, v{65+4*ee+2*i}")
        e(f"buffer_store_dwordx4 v[{80+4*ee}:{83+4*ee}], v{vQS}, s[4:7], 0 offen offset:{1024*ee} sc1")
    e("s_mov_b64 exec, -1")
    stamp(3)
    for k in range(4):
        e(f"""s_mov_b32 m0, s47
              s_add_u32 s47, s47, 8192
              buffer_load_dwordx4 v{vDQ}, s[20:23], s44 offen {ntv} lds
              buffer_load_dwordx4 v{vDQ+1}, s[20:23], s44 offen offset:1024 {ntv} lds
              s_add_u32 s44, s44, 0x40000""")
    e(f"""s_mul_i32 s44, {sU}, {36 * 9216}
          s_mul_i32 s50, {sX}, 1152
          s_add_u32 s44, s44, s50
          s_mul_i32 s49, {sW}, 9216
          s_mul_i32 s53, s38, 147456
          s_add_u32 s53, s53, s49
          s_add_u32 s45, s44, {4 * 73728}
          s_lshl3_add_u32 s44, s49, s44
          s_add_u32 s47, s49, {R3}""")
    E(dma9(vW1, 24, "s44", "s47"))
    e(f"""s_cmp_lg_u32 {sW}, 0
          s_cbranch_scc1 L_qv_nx1
          s_mov_b32 s47, {R3 + 4 * 9216}""")
    E(dma9(vW1, 24, "s45", "s47", 5))
    e("L_qv_nx1:")
    def wo_dma(sg, reg):
        d = dma9(vL, 16, "s44", "s47", fl=nt)
        d[0] = f"s_xor_b32 s52, s39, {sg}\ns_mul_i32 s52, s52, 36864\ns_add_u32 s44, s53, s52\ns_add_u32 s47, s49, {reg}\n" + d[0]
        return d
    def wo_frag(sg, t):
        i = sg * 9 + t
        return ("a", 128 + 4 * i) if i < 32 else ("v", 240 + 4 * (i - 32))
    def wo_read(sg):
        base, off = (vT, sg * 36864) if sg < 2 else (vT2, (sg - 2) * 36864)
        out = []
        for t in range(9):
            f, r = wo_frag(sg, t)
            for u in range(2):
                out.append(f"ds_read_b64_tr_b16 {f}[{r+2*u}:{r+2*u+1}], v{base + (t & 3)} offset:{off + u * 18432 + (t >> 2) * 128}")
        return out
    e("s_waitcnt vmcnt(9)\ns_barrier")
    uv = []
    for k in range(4):
        for ct in range(8):
            for u in range(2):
                r = (k * 8 + ct) * 4 + 2 * u
                uv.append(f"ds_read_b64_tr_b16 a[{r}:{r+1}], v{vTR + ct} offset:{k * 8192 + u * 1024}")
    E(weave(uv, wo_dma(0, R0), every=7))
    e("s_waitcnt vmcnt(9) lgkmcnt(0)\ns_barrier")
    gemv36(vT2, R3 - R2, vT16, vY, vY16, 64, 120, 160, vHM, 2048, side=wo_dma(1, R1))
    stamp(4)
    E(wo_dma(2, R2))
    e("s_waitcnt vmcnt(21)\ns_barrier")
    E(weave(wo_read(0), wo_dma(3, R3), every=2))
    e("s_waitcnt vmcnt(18)\ns_barrier"); E(wo_read(1))
    e("s_waitcnt vmcnt(9)\ns_barrier"); E(wo_read(2))
    e("s_waitcnt vmcnt(0)\ns_barrier"); E(wo_read(3))
    stamp(5)
    G = 64
    GR = 96
    e(f"""s_mov_b32 s54, 0
          s_movk_i32 s50, 4096
          s_movk_i32 s51, 8192
          s_movk_i32 s52, 12288
          L_h3:
          buffer_load_dwordx4 v[20:23], v{vFL}, s[4:7], 0 offen sc1
          s_add_u32 s54, s54, 1
          s_cmp_gt_u32 s54, {SPIN}
          s_waitcnt vmcnt(0)
          s_cbranch_scc1 L_h3_done
          v_cmp_ne_u64 vcc, {TP}, v[22:23]
          s_cbranch_vccnz L_h3
          L_h3_done:""")
    for i in range(4): e(f"buffer_load_dwordx4 v[{G+4*i}:{G+4*i+3}], v{vH3}, s[4:7], {'0' if i == 0 else f's{49+i}'} offen sc1")
    stamp(6)
    e("v_mov_b32 v24, v20")
    for s_ in (8, 4, 2, 1): e(f"v_max_f32_dpp v24, v24, v24 row_ror:{s_} row_mask:0xf bank_mask:0xf")
    e("""v_mov_b32 v25, v24
         v_permlane16_swap_b32 v24, v25
         v_max_f32 v24, v24, v25
         v_sub_f32 v24, v20, v24
         v_exp_f32 v24, v24
         v_mul_f32 v25, v24, v21""")
    E(allred32(25, 26))
    e(f"v_rcp_f32 v25, v25\nv_mul_f32 v24, v24, v25\ns_waitcnt lgkmcnt(0)")
    for r in range(4): e(f"ds_bpermute_b32 v{28+r}, v{vBP}, v24 offset:{4 * r}")
    D2, AC = 104, 136
    for a in range(3): e(f"v_mov_b32 v{GR-16+4*a+3}, {sT}")
    GR = GR - 16
    e("s_waitcnt vmcnt(0) lgkmcnt(0)")
    stamp(8)
    main = []
    for ct in range(8):
        for k in range(4):
            main.append(mf(("v", D2 + 4 * ct), ("v", G + 4 * k), ("a", (k * 8 + ct) * 4), None if k == 0 else ("v", D2 + 4 * ct)))
    side = []
    for ct in range(8):
        side += [f"v_mul_f32 v{AC+ct}, v28, v{D2+4*ct}", f"v_fmac_f32 v{AC+ct}, v29, v{D2+4*ct+1}", f"v_fmac_f32 v{AC+ct}, v30, v{D2+4*ct+2}", f"v_fmac_f32 v{AC+ct}, v31, v{D2+4*ct+3}"]
    E(weave(main, side, start=8))
    for k in range(4): e(f"v_permlane32_swap_b32 v{AC+k}, v{AC+k+4}")
    for k in range(4): e(f"v_add_f32 v{AC+k}, v{AC+k}, v{AC+k+4}")
    for k in range(2): e(f"v_permlane16_swap_b32 v{AC+k}, v{AC+k+2}")
    for k in range(2): e(f"v_add_f32 v{AC+k}, v{AC+k}, v{AC+k+2}")
    e(f"""v_cvt_pk_bf16_f32 v{AC}, v{AC}, v{AC+1}
          ds_write_b16 v{vCW}, v{AC}
          ds_write_b16_d16_hi v{vCW}, v{AC} offset:32
          s_waitcnt lgkmcnt(0)
          s_barrier""")
    CA, D3 = 64, 144
    for sg in range(4): e(f"ds_read2_b64 v[{CA+4*sg}:{CA+4*sg+3}], v{vCR} offset0:{8*sg} offset1:{8*sg+4}")
    e("s_mov_b32 s50, 0x10000\ns_mov_b32 s51, 0x20000\ns_mov_b32 exec_hi, 0")
    e.auto = True
    def emit_out(a):
        for t in range(3):
            r = D3 + 4 * (3 * a + t)
            e(f"v_add_f32 v{GR+4*a+t}, v{r}, v{r+1}")
        e(f"buffer_store_dwordx4 v[{GR+4*a}:{GR+4*a+3}], v{vS5}, s[4:7], {'0' if a == 0 else f's{49+a}'} offen sc1")
    for t in range(9):
        for sg in range(4):
            e(mf(("v", D3 + 4 * t), ("v", CA + 4 * sg), wo_frag(sg, t), None if sg == 0 else ("v", D3 + 4 * t)))
        if t in (4, 7): emit_out((t - 2) // 3)
    emit_out(2)
    e.auto = False
    e("s_mov_b32 exec_hi, -1")
    stamp(7)
    e("s_branch L_fin")

    e("L_kv2:")
    e.dsq = []
    vQK, vPV = 24, 28
    vQL, vXW, vMW, vMR, vRS, vFS, vQWr, vPWr = 44, 45, 46, 47, 48, 49, 50, 51
    QF, QS, T2, O, P_, S, REC = 64, 128, 160, 160, 192, 224, 128
    e(f"""s_load_dwordx2 s[16:17], s[0:1], 72
          s_load_dwordx2 s[20:21], s[0:1], 64
          s_load_dwordx2 s[24:25], s[0:1], 80
          s_load_dwordx2 s[40:41], s[0:1], 88
          v_and_b32 v4, 15, v1                    ; rho
          v_lshrrev_b32 v52, 3, v4
          v_lshlrev_b32 v7, 2, v52
          v_xor_b32 v7, v7, v4
          v_and_b32 v7, 7, v7
          v_lshl_or_b32 v7, v7, 1, v52            ; f(rho)
          v_xor_b32 v7, v7, v2
          v_lshlrev_b32 v7, 4, v7
          v_lshl_add_u32 v7, v4, 10, v7
          v_add_u32 v{vQK}, s46, v7""")
    for m in range(1, 4): e(f"v_xor_b32 v{vQK+m}, {64 * m}, v{vQK}")
    e(f"""v_lshrrev_b32 v53, 2, v1                ; key = 4g+r
          v_lshrrev_b32 v52, 5, v1
          v_lshlrev_b32 v7, 2, v52
          v_xor_b32 v7, v7, v53
          v_and_b32 v7, 7, v7
          v_lshl_or_b32 v7, v7, 1, v52            ; f(key)
          v_lshlrev_b32 v7, 1, v7
          v_and_b32 v52, 3, v1
          v_xor_b32 v7, v7, v52
          v_lshlrev_b32 v7, 3, v7
          v_lshl_add_u32 v7, v53, 10, v7
          s_lshl_b32 s50, {sW}, 8
          v_add_u32 v{vPV}, s50, v7""")
    for ct in range(1, 8): e(f"v_xor_b32 v{vPV+ct}, {32 * ct}, v{vPV}")
    for ct in range(8): e(f"v_add_u32 v{vPV+8+ct}, 0x10000, v{vPV+ct}")
    e(f"""v_lshlrev_b32 v52, 6, v4
          v_lshl_add_u32 v52, v2, 4, v52          ; rho*64 + g*16
          s_lshr_b32 s50, s48, 5
          s_lshl1_add_u32 s50, s50, s49
          s_lshl2_add_u32 s50, s50, {sW}
          s_lshl_b32 s50, s50, 13
          s_add_u32 s50, s50, {WS_Q}
          v_add_u32 v{vQL}, s50, v52
          v_add_u32 v{vXW}, {QX}, v3
          v_lshlrev_b32 v52, 4, v4
          v_add_u32 v{vMR}, {MX}, v52
          s_lshl_b32 s50, {sW}, 2
          v_add_u32 v{vMW}, s50, v{vMR}
          s_lshl2_add_u32 s50, s49, {sW}
          s_lshl_b32 s50, s50, 6
          s_add_u32 s50, s50, s48
          s_lshl_b32 s50, s50, 8
          s_add_u32 s50, s50, {WS_FL}
          v_add_u32 v{vFS}, s50, v52
          v_lshlrev_b32 v52, 16, v4
          v_lshl_add_u32 v52, v2, 4, v52
          s_lshl_b32 s50, s49, 6
          s_add_u32 s50, s50, {sW}
          s_lshl_b32 s50, s50, 8
          s_add_u32 s50, s50, s48
          s_lshl_b32 s50, s50, 6
          s_add_u32 s50, s50, {WS_H3}
          v_add_u32 v{vRS}, s50, v52
          s_lshl_b32 s50, {sW}, 12
          s_lshl_b32 s51, {sW}, 10
          v_add_u32 v{vQWr}, s50, v{vXW}
          v_add_u32 v{vPWr}, s51, v{vXW}
          s_xor_b32 s45, s44, 0x20000""")
    srd(4, WS_BYTES); srd(28, 2304); srd(16, 4608 * 1152); srd(20, 9216); srd(24, 1152); srd(40, 2304)
    e("s_waitcnt lgkmcnt(0)")
    make_tag()
    E(s0[NEARLY:])
    e("s_add_u32 s44, s44, 0x10000")
    E(slot_dma("s44", "s_add_u32 m0, s46, 0x4000"))
    stamp(1)
    def qk_reads(f, r0, sp):
        return [f"ds_read_b128 {f}[{r0+4*k}:{r0+4*k+3}], v{vQK + (k & 3)} offset:{sp * 16384 + (k >> 2) * 256}" for k in range(16)]
    def pv_read(base, k, ct, sp):
        r = base + (k * 8 + ct) * 4 + 2 * sp
        return f"ds_read_b64_tr_b16 a[{r}:{r+1}], v{vPV + ct + 8 * (k >> 1)} offset:{(k & 1) * 32768 + sp * 16384}"
    def frags(sp):
        E(qk_reads("a", sp * 64, sp))
        for k in range(4):
            for ct in range(8): e(pv_read(128, k, ct, sp))
    def qloads():
        for i in range(8):
            e(f"buffer_load_dwordx4 v[{QS+4*i}:{QS+4*i+3}], v{vQL}, s[4:7], {'s55' if i >= 4 else '0'} offen offset:{(i & 3) * 1024} sc1")
    def qcheck():
        for t in range(4):
            r = QS + 8 * t
            e(f"v_bitop3_b32 v{52+2*t}, v{r}, v{r+6}, s36 bitop3:0x7e\nv_bitop3_b32 v{53+2*t}, v{r+1}, v{r+7}, s37 bitop3:0x7e")
        e("""v_or3_b32 v52, v52, v53, v54
             v_or3_b32 v55, v55, v56, v57
             v_or3_b32 v52, v52, v58, v59
             v_or_b32 v52, v52, v55
             v_cmp_ne_u32 vcc, 0, v52""")
    e("s_movk_i32 s55, 4096\ns_waitcnt vmcnt(16)\ns_barrier")
    frags(0)
    e("s_waitcnt lgkmcnt(0)\ns_barrier")
    stamp(2)
    E(slot_dma("s45", "s_mov_b32 m0, s46"))
    qloads()
    e("s_waitcnt vmcnt(24)\ns_barrier")
    frags(1)
    e("s_add_u32 s45, s45, 0x10000\ns_waitcnt lgkmcnt(0)\ns_barrier")
    stamp(3)
    s3 = slot_dma("s45", "s_add_u32 m0, s46, 0x4000")
    E(s3[:8])
    e("s_waitcnt vmcnt(8)")
    qcheck()
    qw = [f"ds_write_b128 v{vQWr}, v[{QS+8*t+2}:{QS+8*t+5}] offset:{1024 * t}" for t in range(4)]
    qr = [f"ds_read_b128 v[{QF+4*k}:{QF+4*k+3}], v{vXW} offset:{1024 * k}" for k in range(16)]
    e("s_cbranch_vccz L_q_ok")
    E(s3[8:])
    e(f"""s_mov_b32 s54, 0
          L_q_retry:
          s_and_b64 exec, exec, vcc
          s_add_u32 s54, s54, 1""")
    qloads()
    e(f"s_cmp_gt_u32 s54, {SPIN}\ns_waitcnt vmcnt(0)\ns_cbranch_scc1 L_q_giveup")
    qcheck()
    e("s_cbranch_vccnz L_q_retry\nL_q_giveup:\ns_mov_b64 exec, -1")
    E(qw)
    e("s_branch L_q_go\nL_q_ok:")
    E(qw)
    E(s3[8:])
    e("L_q_go:\ns_waitcnt lgkmcnt(0)\ns_barrier")
    stamp(4)
    e.dsq = []; e.auto = True
    E(qr[:8])
    def tile(sr, f, r0): return [mf(("v", sr), (f, r0 + 4 * k), ("v", QF + 4 * k), None if k == 0 else ("v", sr)) for k in range(16)]
    E(weave(tile(S, "a", 0), qr[8:] + qk_reads("v", T2, 0)[:8]))
    E(weave(tile(S + 4, "a", 64), qk_reads("v", T2, 0)[8:]))
    e("s_waitcnt vmcnt(0)")
    stamp(11)
    early = [pv_read(0, k, ct, 0) for k in (2, 3) for ct in range(8)]
    E(weave(tile(S + 8, "v", T2), qk_reads("a", 0, 1)))
    mx = [f"v_max3_f32 v55, v{S}, v{S+1}, v{S+2}", f"v_max3_f32 v55, v55, v{S+3}, v{S+4}", f"v_max3_f32 v55, v55, v{S+5}, v{S+6}",
          f"v_max3_f32 v55, v55, v{S+7}, v{S+8}", f"v_max3_f32 v55, v55, v{S+9}, v{S+10}", f"v_max_f32 v55, v55, v{S+11}"]
    E(weave(weave(tile(S + 12, "a", 0), early), mx, start=16, every=2))
    stamp(12)
    e(f"""v_max3_f32 v55, v55, v{S+12}, v{S+13}
          v_max3_f32 v55, v55, v{S+14}, v{S+15}
          v_mov_b32 v56, v55
          v_permlane32_swap_b32 v55, v56
          v_max_f32 v55, v55, v56
          v_mov_b32 v56, v55
          v_permlane16_swap_b32 v55, v56
          v_max_f32 v55, v55, v56
          ds_write_b32 v{vMW}, v55
          s_waitcnt lgkmcnt(0)
          s_barrier
          ds_read_b128 v[56:59], v{vMR}
          v_max3_f32 v60, v56, v57, v58
          v_max_f32 v60, v60, v59""")
    for hf in range(2):
        for i in range(4): e(f"v_pk_add_f32 v[{S+8*hf+2*i}:{S+8*hf+2*i+1}], v[{S+8*hf+2*i}:{S+8*hf+2*i+1}], v[60:61] op_sel_hi:[1,0] neg_lo:[0,1] neg_hi:[0,1]")
        for i in range(8): e(f"v_exp_f32 v{S+8*hf+i}, v{S+8*hf+i}")
        for i in range(4): e(f"v_cvt_pk_bf16_f32 v{240+4*hf+i}, v{S+8*hf+2*i}, v{S+8*hf+2*i+1}")
        e(f"ds_write_b128 v{vPWr}, v[{240+4*hf}:{243+4*hf}] offset:{PX - QX + 4096 * hf}")
    e("s_waitcnt lgkmcnt(0)\ns_barrier")
    for k in range(8): e(f"ds_read_b128 v[{P_+4*k}:{P_+4*k+3}], v{vXW} offset:{PX - QX + 1024 * k}")
    stamp(13)
    late = []
    for ct in range(8):
        late += [pv_read(0, 0, ct, 0), pv_read(0, 0, ct, 1), pv_read(0, 1, ct, 0), pv_read(0, 1, ct, 1), pv_read(0, 2, ct, 1), pv_read(0, 3, ct, 1)]
    pv0 = [mf(("v", O + 4 * ct), ("a", 128 + (k * 8 + ct) * 4), ("v", P_ + 4 * k), None if k == 0 else ("v", O + 4 * ct)) for k in range(4) for ct in range(8)]
    pv1 = [mf(("v", O + 4 * ct), ("a", (k * 8 + ct) * 4), ("v", P_ + 16 + 4 * k), ("v", O + 4 * ct)) for ct in range(8) for k in range(4)]
    def epi(t):
        return [f"v_cvt_pk_bf16_f32 v{REC+4*t+d}, v{O+8*t+2*d}, v{O+8*t+2*d+1}" for d in range(4)] + \
               [f"buffer_store_dwordx4 v[{REC+4*t}:{REC+4*t+3}], v{vRS}, s[4:7], {'0' if t == 0 else f's{54+t}'} offen sc1"]
    e("s_movk_i32 s56, 8192\ns_movk_i32 s57, 12288")
    seq = weave(pv0 + pv1[:16], late)
    E(seq)
    E(weave(pv1[16:24], epi(0) + epi(1)[:2]))
    E(weave(pv1[24:32], epi(1)[2:] + epi(2)[:2] + ["v_mov_b32 v52, 0x3f803f80\nv_mov_b32 v53, v52", "v_mov_b32 v54, v52\nv_mov_b32 v55, v52"]))
    lm = [mf(("v", 56), ("v", 52), ("v", P_ + 4 * k), None if k == 0 else ("v", 56)) for k in range(8)]
    E(weave(lm[:4], epi(2)[2:] + epi(3)[:2], per=2))
    E(epi(3)[2:])
    stamp(5)
    E(lm[4:])
    e.auto = False
    vW2, vTk, vT16k, vM5, vHA, vHA16 = 8, 18, 22, 26, 27, 28
    d9_addrs(None, vW2, 18432 - 4608, 2, 64)
    e(f"v_mov_b32 v61, v56\nv_mov_b32 v62, s36\nv_mov_b32 v63, s37")
    e(f"""s_lshr_b32 s50, {sU}, 2
          s_mul_i32 s50, s50, 144
          s_mul_i32 s51, {sX}, 576
          s_add_u32 s50, s50, s51
          s_lshl2_add_u32 s58, s39, s50
          s_mul_i32 s44, s58, 1152
          s_add_u32 s45, s44, {4 * 36864}
          s_mul_i32 s47, {sW}, 9216
          s_lshl2_add_u32 s44, s47, s44
          s_lshl4_add_u32 s50, {sX}, {sU}
          s_mul_i32 s50, s50, 3
          s_add_u32 s50, s50, {sW}
          s_lshl_b32 s50, s50, 11
          s_add_u32 s59, s50, {WS_HM}
          v_and_b32 v29, 3, v1
          v_lshl_add_u32 v30, v2, 4, v29          ; 16g+e
          s_mul_i32 s50, {sW}, 48
          s_add_u32 s50, s50, s58
          v_add_lshl_u32 v31, v30, s50, 1
          s_mov_b64 exec, 0xffff
          s_waitcnt vmcnt(0)
          buffer_store_dwordx4 v[60:63], v{vFS}, s[4:7], 0 offen sc1
          s_mov_b64 exec, -1""")
    stamp(6)
    e("s_barrier")
    e(f"""s_cmp_eq_u32 {sW}, 3
          s_cbranch_scc1 L_kv_w3
          buffer_load_ushort v32, v31, s[20:23], 0 offen
          buffer_load_dwordx4 v[64:67], v3, s[4:7], s59 offen sc1
          buffer_load_dwordx4 v[68:71], v3, s[4:7], s59 offen offset:1024 sc1
          s_branch L_kv_nx2
          L_kv_w3:
          s_mov_b32 s50, {4 * 9216}""")
    E(dma9(vW2, 16, "s45", "s50", 5))
    e("L_kv_nx2:")
    E(dma9(vW2, 16, "s44", "s47"))
    e(f"""s_mul_i32 s44, {sX}, 12
          s_add_u32 s44, s44, {sU}                ; r
          s_lshr_b32 s50, s44, 3
          s_mul_i32 s50, s50, 48
          s_and_b32 s51, s44, 3
          s_lshl2_add_u32 s50, s51, s50
          v_add_lshl_u32 v33, v30, s50, 1
          s_bfe_u32 s51, s44, 0x10002
          s_mul_i32 s48, s51, 1152
          v_lshlrev_b32 v34, 4, v0
          s_lshl_b32 s45, s44, 13
          s_add_u32 s46, s45, {WS_H5M}
          s_add_u32 s47, s46, 4096
          v_lshl_add_u32 v35, v2, 2, v29
          v_lshlrev_b32 v35, 4, v35
          v_add_u32 v35, {FX}, v35
          s_lshl_b32 s50, {sW}, 2
          v_add_u32 v36, s50, v35""")
    t9_addrs(vTk, vT16k, 0, 72)
    h5_store_addr(vM5, WS_H5M, 72)
    e(f"""v_and_b32 v37, 4, v1
          v_lshlrev_b32 v38, 5, v37
          v_add_u32 v{vHA16}, {HX}, v38
          v_lshl_add_u32 v{vHA}, v2, 3, v{vHA16}
          s_cmp_eq_u32 {sW}, 3
          s_cbranch_scc1 L_kv_nx3
          s_mov_b32 s54, 0
          s_waitcnt vmcnt(9)
          L_hm:
          v_bitop3_b32 v39, v67, v71, {sT} bitop3:0x7e
          v_cmp_ne_u32 vcc, 0, v39
          s_cbranch_vccz L_hm_done
          buffer_load_dwordx4 v[64:67], v3, s[4:7], s59 offen sc1
          buffer_load_dwordx4 v[68:71], v3, s[4:7], s59 offen offset:1024 sc1
          s_add_u32 s54, s54, 1
          s_cmp_le_u32 s54, {SPIN}
          s_waitcnt vmcnt(0)
          s_cbranch_scc1 L_hm
          L_hm_done:""")
    stamp(14)
    red16(64); red16(68)
    c1 = -2 * math.sqrt(2 / math.pi) * math.log2(math.e)
    e(f"""v_cmp_ne_u32 vcc, 0, v37
          v_lshlrev_b32 v32, 16, v32
          v_cndmask_b32 v64, v64, v68, vcc""")
    rbf("v64", "v64")
    e("v_add_f32 v64, v64, v32")
    rbf("v64", "v64")
    e(f"""v_mul_f32 v65, v64, v64
          v_mov_b32 v66, {f32(c1)}
          v_fmac_f32 v66, {f32(c1 * 0.044715)}, v65
          v_mul_f32 v65, v66, v64
          v_exp_f32 v65, v65
          v_add_f32 v65, 1.0, v65
          v_rcp_f32 v65, v65
          v_mul_f32 v64, v64, v65
          v_cvt_pk_bf16_f32 v64, v64, v64
          v_lshl_add_u32 v39, v29, 1, v{vHA}
          s_mul_i32 s50, {sW}, 24
          v_add_u32 v39, s50, v39
          s_mov_b32 exec_hi, 0xffff
          ds_write_b16 v39, v64
          s_mov_b32 exec_hi, -1
          L_kv_nx3:""")
    e(f"""s_cmp_ge_u32 {sU}, 12
          s_cbranch_scc1 L_kv_nx4
          buffer_load_ushort v40, v33, s[24:27], 0 offen
          buffer_load_ushort v41, v33, s[28:31], s48 offen""")
    if pretouch:
        e(f"""s_add_u32 s50, s45, {WS_H5S}
              v_lshlrev_b32 v42, 5, v0
              buffer_load_dword v43, v42, s[4:7], s50 offen sc1""")
    e(f"""s_waitcnt vmcnt({3 if pretouch else 2})
          s_branch L_kv_nx5
          L_kv_nx4:
          s_waitcnt vmcnt(0)
          L_kv_nx5:
          s_waitcnt lgkmcnt(0)
          s_barrier""")
    e.dsq = []
    stamp(15)
    gemv36(vTk, 0, vT16k, vHA, vHA16, 64, 120, 160, vM5, 65536)
    stamp(7)
    e(f"""s_cmp_ge_u32 {sU}, 12
          s_cbranch_scc1 L_fin
          s_mov_b32 s57, 0
          s_waitcnt vmcnt(0)
          L_f_loop:
          s_mov_b32 s54, 0
          L_f_poll:
          buffer_load_dwordx4 v[64:67], v34, s[4:7], s46 offen sc1
          buffer_load_dwordx4 v[68:71], v34, s[4:7], s47 offen sc1
          s_add_u32 s54, s54, 1
          s_cmp_gt_u32 s54, {SPIN}
          s_waitcnt vmcnt(0)
          s_cbranch_scc1 L_f_done
          v_bitop3_b32 v63, v67, v71, {sT} bitop3:0x7e
          v_cmp_ne_u32 vcc, 0, v63
          s_and_b64 exec, exec, vcc
          s_cbranch_execnz L_f_poll
          L_f_done:
          s_mov_b64 exec, -1
          v_add_f32 v64, v64, v68
          v_add_f32 v65, v65, v69
          v_add_f32 v66, v66, v70""")
    red16(64)
    e(f"""ds_write_b32 v36, v64
          s_waitcnt lgkmcnt(0)
          s_barrier
          ds_read_b128 v[64:67], v35
          s_cmp_lg_u32 s57, 0
          s_waitcnt lgkmcnt(0)
          v_add_f32 v64, v64, v65
          v_add_f32 v66, v66, v67
          v_add_f32 v64, v64, v66""")
    rbf("v64", "v64")
    e(f"""s_cbranch_scc1 L_f_out
          v_lshlrev_b32 v40, 16, v40
          v_add_f32 v64, v64, v40""")
    rbf("v64", "v64")
    e(f"""v_mul_f32 v65, {f32(-math.log2(math.e))}, v64
          v_exp_f32 v65, v65
          v_add_f32 v65, 1.0, v65
          v_rcp_f32 v65, v65
          v_mul_f32 v40, v64, v65""")
    rbf("v40", "v40")
    e(f"""v_lshlrev_b32 v41, 16, v41
          v_add_u32 v35, 256, v35
          v_add_u32 v36, 256, v36
          s_add_u32 s46, s45, {WS_H5S}
          s_add_u32 s47, s46, 4096
          s_mov_b32 s57, 1""")
    stamp(8)
    e(f"""s_branch L_f_loop
          L_f_out:
          v_mul_f32 v64, v64, v40""")
    rbf("v64", "v64")
    e(f"""v_add_f32 v64, v41, v64
          v_cvt_pk_bf16_f32 v64, v64, v64
          s_cmp_lg_u32 {sW}, 0
          s_cbranch_scc1 L_fin
          s_mov_b32 exec_lo, 0x000f000f
          s_mov_b32 exec_hi, 0x0000000f
          buffer_store_short v64, v33, s[40:43], s48 offen
          s_cmp_lg_u32 s44, 0
          s_cbranch_scc1 L_fin
          s_mov_b64 exec, 1
          v_mov_b32 v65, {sT}
          v_mov_b32 v66, {WS_EPOCH}
          buffer_store_dword v65, v66, s[4:7], 0 offen""")
    e("L_fin:")
    if pad:
        role, k = pad
        e(f"""s_waitcnt lgkmcnt(0)
              s_bfe_u32 s50, s2, 0x10003
              s_cmp_eq_u32 s50, {role}
              s_cselect_b32 s50, s{64 + 2 * k}, s64
              s_add_u32 s50, s50, 4000
              s_mov_b32 s54, 0
              L_pad:
              s_add_u32 s54, s54, 1
              s_cmp_gt_u32 s54, 100000
              s_cbranch_scc1 L_end
              s_memrealtime s[52:53]
              s_waitcnt lgkmcnt(0)
              s_sub_u32 s51, s52, s50
              s_cmp_lt_i32 s51, 0
              s_cbranch_scc1 L_pad""")
    if stamps:
        stamp(9)
        e("s_mov_b64 exec, -1\ns_waitcnt lgkmcnt(0)")
        for k in range(16): e(f"v_mov_b32 v{64+k}, s{64 + 2 * k}")
        e(f"""s_lshl2_add_u32 s50, s2, {sW}
              s_lshl_b32 s50, s50, 6
              s_add_u32 s50, s50, {STAMP_OFF}
              v_mov_b32 v63, 0
              s_mov_b64 exec, 1
              buffer_store_dwordx4 v[64:67], v63, s[4:7], s50 offen
              buffer_store_dwordx4 v[68:71], v63, s[4:7], s50 offen offset:16
              buffer_store_dwordx4 v[72:75], v63, s[4:7], s50 offen offset:32
              buffer_store_dwordx4 v[76:79], v63, s[4:7], s50 offen offset:48""")
    e("L_end:\ns_endpgm")
    head = f"""; Persistent single-launch kernel: absorbed-MLA decode attention + channel MLP (generated by gen/gen2.py)
; @launch grid=(256,1,1) block=(256,1,1) lds=163840
.amdgcn_target "amdgcn-amd-amdhsa--gfx950"
.text
.globl {K}
.p2align 8
.type {K},@function
"""
    tail = f""".section .rodata,"a"
.p2align 6
.amdhsa_kernel {K}
  .amdhsa_next_free_vgpr 512
  .amdhsa_next_free_sgpr 96
  .amdhsa_accum_offset 256
  .amdhsa_group_segment_fixed_size 0
  .amdhsa_kernarg_size 112
  .amdhsa_user_sgpr_count 2
  .amdhsa_user_sgpr_kernarg_segment_ptr 1
  .amdhsa_system_sgpr_workgroup_id_x 1
.end_amdhsa_kernel
"""
    return head + e.text() + tail

if __name__ == "__main__":
    out = sys.argv[1]
    kw = {}
    for a in sys.argv[2:]:
        k, v = a.split("=", 1)
        kw[k] = eval(v)
    open(out, "w").write(gen(**kw))
```

```python
import sys, math, struct
from asmlib import Asm, weave

NAME = "recurrent_scan__compressed_kv_cla__mixer_channel_mlp__decode"
K = NAME + "_kernel"
WS_BYTES = 268435456
SPIN = 1 << 17
def f32(x): return "0x%08x" % struct.unpack("<I", struct.pack("<f", x))[0]

def gen(stamps=False, wsb=0, touch_uk=True, nt="", ntv="", pad=None, codepf=True, pretouch=True, w2touch=False, nt2="", ntuk="", tlb=False, hu2=4, only=None):
    WS_EPOCH = wsb
    WS_Q = wsb + 4096
    WS_HU2 = wsb + 0x30000
    WS_HU3 = wsb + 0x40000
    WS_H3 = wsb + 0x60000
    WS_HM = WS_H3 + 128 * 16384 + 4096
    WS_H5M = WS_HM + 128 * 6144
    WS_H5S = WS_H5M + 96 * 8192
    STAMP_OFF = 255 << 20
    e = Asm()
    def E(lst):
        for x in lst: e(x)
    def stamp(k):
        if only is not None and k not in only and k not in (0, 9): return
        if stamps or (pad and (k == 0 or k == pad[1])): e(f"s_memrealtime s[{64 + 2 * k}:{65 + 2 * k}]")
    def srd(n, size): e(f"s_mov_b32 s{n + 2}, {size}\ns_mov_b32 s{n + 3}, 0x20000")
    sX, sU, sW, sT = "s3", "s33", "s34", "s36"
    TP = "s[36:37]"
    def rbf(dst, src): e(f"v_cvt_pk_bf16_f32 {dst}, {src}, {src}\nv_and_b32 {dst}, 0xffff0000, {dst}")
    def mf(d, a, b, c, op="v_mfma_f32_16x16x32_bf16", n=4):
        def r(x, k): return f"{x[0]}[{x[1]}:{x[1] + k - 1}]"
        return f"{op} {r(d, 4)}, {r(a, n)}, {r(b, n)}, " + ("0" if c is None else r(c, 4))
    def load_epoch():
        e(f"s_load_dword s35, s[4:5], {WS_EPOCH}" if WS_EPOCH < (1 << 20) else f"s_mov_b32 s51, {WS_EPOCH}\ns_load_dword s35, s[4:5], s51")
    def make_tag():
        e("s_mul_i32 s36, s35, 0x41c64e6d\ns_add_u32 s36, s36, 0x3c6ef35f\ns_mul_i32 s37, s36, 0x2c9277b5\ns_add_u32 s37, s37, 0xac564b05")
    def red16(v0):
        e(f"""v_permlane32_swap_b32 v{v0}, v{v0+2}
              v_permlane32_swap_b32 v{v0+1}, v{v0+3}
              v_add_f32 v{v0}, v{v0}, v{v0+2}
              v_add_f32 v{v0+1}, v{v0+1}, v{v0+3}
              v_permlane16_swap_b32 v{v0}, v{v0+1}
              v_add_f32 v{v0}, v{v0}, v{v0+1}
              v_add_f32_dpp v{v0}, v{v0}, v{v0} row_ror:4 row_mask:0xf bank_mask:0xf
              v_add_f32_dpp v{v0}, v{v0}, v{v0} row_ror:8 row_mask:0xf bank_mask:0xf""")
    def d9_addrs(vlin, vrow_out, mul, shift, vt):
        e(f"v_lshrrev_b32 v{vt}, 3, v1\nv_mul_u32_u24 v{vt}, 57, v{vt}\ns_mov_b32 s50, {mul}")
        for i in range(9):
            dst = vlin + i if vlin is not None else vt + 3
            e(f"""v_add_u32 v{vt+2}, {8 * 57 * i}, v{vt}
                  v_lshrrev_b32 v{vt+3}, 5, v{vt+2}
                  v_and_b32 v{vt+3}, 0x60, v{vt+3}
                  v_lshrrev_b32 v{vt+2}, {9 + shift}, v{vt+2}""")
            if (i >> 2): e(f"s_movk_i32 s51, {(i >> 2) * 4096}\nv_xad_u32 v{dst}, v{vt+3}, v3, s51")
            else: e(f"v_xor_b32 v{dst}, v{vt+3}, v3")
            e(f"v_mad_u32_u24 v{vrow_out + i}, v{vt+2}, s50, v{dst}")
    def dma9(va, srdn, soff, m0, n=9, fl=None):
        fl = ntv if fl is None else fl
        out = []
        for i in range(n):
            pre = f"s_mov_b32 m0, {m0}\n" if i == 0 else ("s_add_u32 m0, m0, 4096\n" if i % 4 == 0 else "")
            off = f" offset:{(i & 3) * 1024}" if i & 3 else ""
            out.append(pre + f"buffer_load_dwordx4 v{va + i}, s[{srdn}:{srdn+3}], {soff} offen{off} {fl} lds")
        return out
    def t9_addrs(vT, vT16, base16, vt):
        e(f"""v_lshrrev_b32 v{vt}, 2, v1            ; 4g+r
              v_bfe_u32 v{vt+1}, v1, 3, 2            ; sw = 2(g&1)+(r>>1)
              v_and_b32 v{vt+2}, 3, v1
              v_lshlrev_b32 v{vt+2}, 3, v{vt+2}      ; 8*(l&3)
              s_movk_i32 s50, 1152
              v_mad_u32_u24 v{vt+3}, v{vt}, s50, v{vt+2}
              v_and_b32 v{vt}, 3, v{vt}              ; r
              v_mad_u32_u24 v{vt+4}, v{vt}, s50, v{vt+2}
              v_add_u32 v{vt+4}, {base16 + 32 * 1152}, v{vt+4}
              v_lshrrev_b32 v{vt}, 1, v{vt}          ; r>>1
              s_mul_i32 s50, {sW}, 9""")
        for m in range(4):
            e(f"""v_xor_b32 v{vt+2}, s50, v{vt+1}
                  v_lshl_add_u32 v{vT+m}, v{vt+2}, 5, v{vt+3}
                  v_xor_b32 v{vt+2}, s50, v{vt}
                  v_lshl_add_u32 v{vT16+m}, v{vt+2}, 5, v{vt+4}""")
            if m < 3: e("s_add_u32 s50, s50, 1")
    def gemv36(vT, off, vT16, vact, vact16, vfr, vacc, vrec, vst, astride, side=()):
        rd = [f"ds_read2_b64 v[{vrec}:{vrec+3}], v{vact} offset1:4", f"ds_read_b64 v[{vrec+4}:{vrec+5}], v{vact16} offset:64"]
        for t in range(9):
            m, z = t & 3, t >> 2
            rd.append(f"ds_read_b64_tr_b16 v[{vfr+6*t}:{vfr+6*t+1}], v{vT+m} offset:{off + z * 128}")
            rd.append(f"ds_read_b64_tr_b16 v[{vfr+6*t+2}:{vfr+6*t+3}], v{vT+m} offset:{off + 18432 + z * 128}")
        for t in range(9):
            m, z = t & 3, t >> 2
            rd.append(f"ds_read_b64_tr_b16 v[{vfr+6*t+4}:{vfr+6*t+5}], v{vT16+m} offset:{z * 128}")
        rd.append(f"v_cmp_gt_u32 vcc, 16, v1\nv_cndmask_b32 v{vrec+4}, 0, v{vrec+4}, vcc\nv_cndmask_b32 v{vrec+5}, 0, v{vrec+5}, vcc")
        for t in range(9): rd.append(mf(("v", vacc + 4 * t), ("v", vrec), ("v", vfr + 6 * t), None))
        for t in range(9): rd.append(mf(("v", vacc + 4 * t), ("v", vrec + 4), ("v", vfr + 6 * t + 4), ("v", vacc + 4 * t), "v_mfma_f32_16x16x16_bf16", 2))
        e.auto = True
        E(weave(rd, side, every=2))
        e.auto = False
        e("s_mov_b32 exec_hi, 0")
        for a in range(3):
            g = vrec + 8 + 4 * a
            for t in range(3): e(f"v_mov_b32 v{g+t}, v{vacc + 4 * (3 * a + t)}")
            e(f"v_mov_b32 v{g+3}, {sT}\ns_mov_b32 s50, {a * astride}")
            e(f"buffer_store_dwordx4 v[{g}:{g+3}], v{vst}, s[4:7], s50 offen sc1")
        e("s_mov_b32 exec_hi, -1")
    def h5_store_addr(vst, base, vt):
        e(f"""v_bfe_u32 v{vt}, v1, 2, 3              ; b*4+q
              v_and_b32 v{vt+1}, 48, v3
              v_lshl_add_u32 v{vt}, v{vt}, 13, v{vt+1}
              s_mul_i32 s50, {sW}, {24 * 8192}
              s_lshl4_add_u32 s51, {sX}, {sU}
              s_lshl_b32 s51, s51, 6
              s_add_u32 s50, s50, s51
              s_add_u32 s50, s50, {base}
              v_add_u32 v{vst}, s50, v{vt}""")

    e(f"{K}:")
    stamp(0)
    e(f"""s_load_dwordx2 s[4:5], s[0:1], 104
          s_load_dwordx2 s[12:13], s[0:1], 24
          s_load_dwordx2 s[28:29], s[0:1], 0
          s_cmp_ge_u32 s2, 256
          s_cbranch_scc1 L_end
          v_lshrrev_b32 v2, 6, v0
          v_and_b32 v1, 63, v0
          s_and_b32 {sX}, s2, 7
          v_readfirstlane_b32 {sW}, v2
          s_lshr_b32 {sU}, s2, 4""")
    if codepf:
        e(f"""s_getpc_b64 s[60:61]
              s_lshr_b32 s50, s2, 3
              s_lshl2_add_u32 s50, s50, {sW}
              s_lshl_b32 s50, s50, 7
              s_addk_i32 s50, 1536
              s_min_u32 s50, s50, L_end-{K}-128
              v_mov_b32 v6, s50
              global_load_dword v6, v6, s[60:61]""")
    e(f"""v_lshlrev_b32 v3, 4, v1
          v_lshrrev_b32 v2, 4, v1                 ; g
          s_lshr_b32 s38, {sU}, 2
          s_lshl2_add_u32 s38, {sX}, s38
          s_and_b32 s39, {sU}, 3                  ; j
          s_mov_b32 s11, 0x20000""")
    NPF = 1 if codepf else 0
    e("s_bitcmp1_b32 s2, 3\ns_cbranch_scc1 L_qv")

    QX, PX, MX, HX, FX = 131072, 147456, 155648, 155904, 156160
    vDA = 8
    e(f"""s_load_dwordx2 s[8:9], s[0:1], 8
          s_lshr_b32 s48, {sU}, 1
          s_lshl3_add_u32 s48, {sX}, s48          ; cidx
          s_and_b32 s49, {sU}, 1                  ; hh
          s_lshl1_add_u32 s50, s48, s49
          s_lshl3_add_u32 s50, s50, {sW}
          s_lshl_b32 s44, s50, 14
          s_lshl_b32 s46, {sW}, 15
          s_mov_b32 s10, {2 * 8192 * 1024}""")
    FT = [2 * ((r & 7) ^ (4 * (r >> 3))) + (r >> 3) for r in range(16)]
    if touch_uk:
        srd(12, 512 * 8192)
        e(f"""v_lshrrev_b32 v4, 1, v0
              v_and_b32 v5, 1, v0
              v_lshlrev_b32 v4, 13, v4
              v_lshl_add_u32 v4, v5, 7, v4
              s_lshl_b32 s50, s39, 20
              s_lshl_b32 s51, s38, 8
              s_add_u32 s50, s50, s51
              s_waitcnt lgkmcnt(0)
              buffer_load_dword v5, v4, s[12:15], s50 offen {nt}""")
    for r in range(16): e(f"v_xor_b32 v{vDA + r}, {FT[r] * 16 + (r >> 2) * 4096}, v3")
    if not touch_uk: e("s_waitcnt lgkmcnt(0)")
    def slot_dma(soff, m0expr, nt=nt):
        out = []
        for r in range(16):
            pre = m0expr + "\n" if r == 0 else ("s_add_u32 m0, m0, 4096\n" if r % 4 == 0 else "")
            off = f" offset:{(r & 3) * 1024}" if r & 3 else ""
            out.append(pre + f"buffer_load_dwordx4 v{vDA + r}, s[8:11], {soff} offen{off} {nt} lds")
        return out
    stamp(10)
    s0 = slot_dma("s44", "s_mov_b32 m0, s46")
    NEARLY = 4 if touch_uk else 8
    E(s0[:NEARLY])
    load_epoch()
    e("s_branch L_kv2")

    R0, R1, R2, R3 = 0, 36864, 73728, 110592
    XN, YN, QQ, CX, CL = 152576, 157184, 159488, 160000, 161024
    vDQ, vTR = 4, 8
    e("L_qv:")
    e(f"""s_load_dwordx2 s[8:9], s[0:1], 16
          s_and_b32 s50, {sW}, 1
          s_lshl_b32 s50, s50, 3
          v_lshl_add_u32 v7, v2, 1, s50
          v_xor_b32 v7, v7, v1
          v_and_b32 v7, 15, v7
          v_lshlrev_b32 v7, 4, v7
          v_lshl_add_u32 v7, v2, 13, v7
          s_lshl_b32 s50, {sW}, 7
          s_add_u32 s50, s50, s38
          s_lshl_b32 s50, s50, 8
          v_add_u32 v{vDQ}, s50, v7
          v_add_u32 v{vDQ+1}, {131072 - 1024}, v{vDQ}
          s_mul_i32 s48, s39, 9
          s_add_u32 s48, s48, 1
          s_lshr_b32 s48, s48, 1
          s_lshl_b32 s44, s48, 18
          s_lshl_b32 s46, {sW}, 11
          s_mov_b32 s10, {576 * 8192}
          v_mul_u32_u24 v16, 36, v1               ; b*1152 + i*36""")
    srd(28, 2304)
    e(f"""s_mov_b32 s47, s46
          s_mov_b32 s45, {4 * 8192}
          s_cmp_lg_u32 {sW}, 0
          s_waitcnt lgkmcnt(0)
          s_cbranch_scc1 L_qv_ld
          buffer_load_dwordx3 v[20:22], v16, s[28:31], 0 offen
          buffer_load_dwordx3 v[24:26], v16, s[28:31], 0 offen offset:12
          buffer_load_dwordx3 v[28:30], v16, s[28:31], 0 offen offset:24
          L_qv_ld:
          s_mov_b32 m0, s47
          s_add_u32 s47, s47, 8192
          buffer_load_dwordx4 v{vDQ}, s[8:11], s44 offen {nt} lds
          buffer_load_dwordx4 v{vDQ+1}, s[8:11], s44 offen offset:1024 {nt} lds
          s_add_u32 s44, s44, 0x40000
          s_cmp_eq_u32 s44, {18 << 18}
          s_cselect_b32 s44, 0, s44
          s_cmp_lt_u32 s47, s45
          s_cbranch_scc1 L_qv_ld
          s_cmp_eq_u32 s45, {9 * 8192}
          s_cbranch_scc1 L_qv2
          s_cmp_eq_u32 s45, {5 * 8192}
          s_cbranch_scc1 L_ln""")
    stamp(12)
    load_epoch()
    e("""s_load_dwordx2 s[16:17], s[0:1], 40
         s_load_dwordx2 s[20:21], s[0:1], 32
         s_load_dwordx2 s[24:25], s[0:1], 56""")
    srd(4, WS_BYTES); srd(12, 512 * 8192); srd(16, 4096 * 1152); srd(20, 512 * 8192); srd(24, 576 * 9216)
    vUKA, vQ0, vXF, vQW, vQR, vQS = 236, 200, 206, 207, 208, 209
    vL, vW1, vT, vT2, vT16 = 180, 190, 212, 216, 220
    vY, vY16, vHM, vH3, vFL, vBP, vCW, vCR, vS5, vHU, vLW, vLR, vMK = 224, 225, 226, 227, 228, 229, 230, 231, 232, 233, 234, 235, 8
    e(f"""v_bfe_u32 v17, v1, 2, 2                 ; (l&15)>>2
          v_and_b32 v18, 3, v1
          v_lshlrev_b32 v19, 1, v18
          v_xor_b32 v19, v19, v2
          v_lshlrev_b32 v19, 4, v19
          v_lshl_add_u32 v19, v18, 8, v19
          v_bfe_u32 v23, v1, 2, 1
          v_lshl_add_u32 v19, v23, 12, v19
          v_bfe_u32 v23, v1, 3, 1
          v_lshl_add_u32 v19, v23, 10, v19
          s_lshl_b32 s50, {sW}, 13
          v_add_u32 v{vUKA}, s50, v19
          v_xor_b32 v{vUKA+1}, 64, v{vUKA}
          v_xor_b32 v{vUKA+2}, 128, v{vUKA}
          v_xor_b32 v{vUKA+3}, 192, v{vUKA}
          v_bfe_u32 v19, v1, 2, 3
          v_lshlrev_b32 v19, 5, v19
          v_lshl_add_u32 v19, v18, 3, v19
          v_lshl_add_u32 v19, v17, 8, v19
          v_lshl_add_u32 v19, v2, 11, v19
          s_lshl_b32 s50, {sW}, 6
          v_xor_b32 v{vQ0}, s50, v19
          v_xor_b32 v{vQ0+1}, 32, v{vQ0}
          v_add_u32 v{vQ0+2}, 0x10000, v{vQ0}
          v_add_u32 v{vQ0+3}, 0x10000, v{vQ0+1}
          v_add_u32 v{vQ0+4}, 0x20000, v{vQ0}
          v_add_u32 v{vQ0+5}, 0x20000, v{vQ0+1}""")
    e(f"""v_and_b32 v23, 1, v1
          v_mul_u32_u24 v19, 2304, v23
          v_lshl_add_u32 v19, v2, 3, v19
          s_lshl_b32 s51, s48, 6
          s_add_u32 s51, s51, {XN}
          v_add_u32 v{vXF}, s51, v19
          v_lshlrev_b32 v19, 8, v23
          v_lshl_add_u32 v27, v2, 4, v19
          v_add_u32 v{vQR}, {QQ}, v27
          v_lshl_add_u32 v19, v2, 3, v19
          s_add_u32 s50, s50, {QQ}
          v_add_u32 v{vQW}, s50, v19
          v_lshlrev_b32 v19, 16, v23
          v_lshl_add_u32 v19, v2, 4, v19
          s_lshr_b32 s55, s38, 4
          s_lshl2_add_u32 s55, s55, s39           ; hh*4+j
          s_lshl2_add_u32 s50, s55, {sW}
          s_lshl_b32 s50, s50, 5
          s_and_b32 s56, s38, 15
          s_add_u32 s50, s50, s56
          s_lshl_b32 s50, s50, 6
          s_add_u32 s50, s50, {WS_Q}
          v_add_u32 v{vQS}, s50, v19
          v_bfe_u32 v19, v1, 2, 1
          v_mul_u32_u24 v27, 1152, v19
          s_mul_i32 s50, {sU}, 72
          s_add_u32 s50, s50, {YN}
          v_add_u32 v{vY16}, s50, v27
          v_lshl_add_u32 v{vY}, v2, 3, v{vY16}
          v_lshl_add_u32 v19, v19, 1, v23
          v_lshlrev_b32 v19, 8, v19
          v_lshl_add_u32 v19, v2, 3, v19
          v_add_u32 v{vCR}, {CX}, v19
          v_mul_u32_u24 v19, 6144, v17
          v_lshl_add_u32 v19, v2, 10, v19
          v_lshl_add_u32 v19, v18, 4, v19
          s_lshl2_add_u32 s50, {sX}, {sW}
          s_mul_i32 s50, s50, {4 * 6144}
          s_lshl_b32 s51, {sU}, 6
          s_add_u32 s50, s50, s51
          s_add_u32 s50, s50, {WS_HM}
          v_add_u32 v{vHM}, s50, v19
          v_lshlrev_b32 v19, 8, v18
          v_lshl_add_u32 v19, v2, 3, v19          ; (n&3)*256 + g*8
          v_add_u32 v{vLR}, {CL}, v19
          s_xor_b32 s50, {sW}, s39
          s_lshl_b32 s50, s50, 6
          s_add_u32 s50, s50, {CX}
          v_add_u32 v{vCW}, s50, v19
          v_and_b32 v18, 15, v1
          v_lshlrev_b32 v19, 5, v18
          v_lshl_add_u32 v19, v2, 3, v19
          s_lshl_b32 s50, {sW}, 8
          s_add_u32 s50, s50, {CL}
          v_add_u32 v{vLW}, s50, v19
          v_lshlrev_b32 v{vBP}, 2, v2
          s_lshl2_add_u32 s50, s38, s39
          s_lshl2_add_u32 s50, s50, {sW}
          s_lshl_b32 s50, s50, 12
          s_add_u32 s50, s50, {WS_H3}
          v_add_u32 v{vH3}, s50, v3
          v_lshlrev_b32 v19, 4, v23
          v_mov_b32 v27, 0xffff
          v_lshlrev_b32 v27, v19, v27
          v_lshrrev_b32 v19, 1, v18
          v_cmp_eq_u32 vcc, 0, v19
          v_cndmask_b32 v{vMK}, 0, v27, vcc
          v_cmp_eq_u32 vcc, 1, v19
          v_cndmask_b32 v{vMK+1}, 0, v27, vcc
          v_cmp_eq_u32 vcc, 2, v19
          v_cndmask_b32 v{vMK+2}, 0, v27, vcc
          v_cmp_eq_u32 vcc, 3, v19
          v_cndmask_b32 v{vMK+3}, 0, v27, vcc
          s_lshl_b32 s50, {sW}, 4
          v_and_b32 v19, 31, v1
          v_xor_b32 v19, s50, v19
          s_lshl_b32 s50, s55, 14
          s_lshl4_add_u32 s50, s56, s50
          s_add_u32 s50, s50, {WS_HU3}
          v_lshl_add_u32 v{vFL}, v19, 8, s50
          s_lshl4_add_u32 s50, s55, s56
          s_lshl2_add_u32 s50, s50, {sW}
          s_lshl_b32 s50, s50, 7
          s_add_u32 s50, s50, {WS_HU2}
          v_mov_b32 v{vHU}, s50
""")
    h5_store_addr(vS5, WS_H5S, 18)
    d9_addrs(vL, vW1, 9216 - 1152, 0, 32)
    t9_addrs(vT, vT16, R3, 32)
    for m in range(4): e(f"v_add_u32 v{vT2+m}, {R2}, v{vT+m}")
    e("s_waitcnt lgkmcnt(0)")
    make_tag()
    if tlb:
        e(f"""s_lshl_b32 s50, s39, 20
              s_load_dword s62, s[20:21], s50
              s_mul_i32 s50, {sU}, {36 * 9216}
              s_load_dword s62, s[24:25], s50
              s_add_u32 s50, s50, {36 * 9216 - 4}
              s_load_dword s62, s[24:25], s50
              s_mul_i32 s50, s38, 147456
              s_load_dword s62, s[16:17], s50
              s_add_u32 s50, s50, {147456 - 4}
              s_load_dword s62, s[16:17], s50
              s_mov_b32 s50, {wsb + (2 << 20) * 3 - 64}
              s_load_dword s62, s[4:5], s50
              s_mov_b32 s50, {WS_HM - 2048}
              s_load_dword s62, s[4:5], s50""")
    e(f"""v_mov_b32 v80, s36
          v_mov_b32 v81, s37
          v_mov_b32 v86, s36
          v_mov_b32 v87, s37
          s_mov_b32 s45, {5 * 8192}
          s_branch L_qv_ld""")
    e(f"L_ln:\ns_mov_b32 s45, {9 * 8192}\ns_cmp_lg_u32 {sW}, 0\ns_cbranch_scc1 L_qv_ld")
    xs = [20, 21, 22, 24, 25, 26, 28, 29, 30]
    F = 40
    e(f"""v_lshrrev_b32 v17, 5, v1
          v_mul_u32_u24 v17, 1152, v17
          v_add_u32 v17, v17, v16
          v_add_u32 v17, {XN}, v17
          s_mov_b32 s51, 0
          s_waitcnt vmcnt(10)""")
    stamp(10)
    e("L_ln_loop:")
    def P(i): return f"v[{F+2*i}:{F+2*i+1}]"
    def unpack(i): return f"v_lshlrev_b32 v{F+2*i}, 16, v{xs[i]}\nv_and_b32 v{F+2*i+1}, 0xffff0000, v{xs[i]}"
    def allred32(v, t):
        return [f"v_add_f32_dpp v{v}, v{v}, v{v} row_ror:{s_} row_mask:0xf bank_mask:0xf" for s_ in (8, 4, 2, 1)] + \
               [f"v_mov_b32 v{t}, v{v}", f"v_permlane16_swap_b32 v{v}, v{t}\nv_add_f32 v{v}, v{v}, v{t}"]
    for i in range(9): e(unpack(i))
    e(f"v_pk_add_f32 v[18:19], {P(0)}, {P(1)}")
    for i in range(2, 9): e(f"v_pk_add_f32 v[18:19], v[18:19], {P(i)}")
    e("v_add_f32 v18, v18, v19")
    E(allred32(18, 19))
    e(f"v_mul_f32 v23, {f32(1 / 576)}, v18")
    rbf("v18", "v23")
    e("v_sub_f32 v23, v23, v18")
    for i in range(9): e(f"v_pk_add_f32 {P(i)}, {P(i)}, v[18:19] op_sel_hi:[1,0] neg_lo:[0,1] neg_hi:[0,1]")
    e(f"v_pk_mul_f32 v[18:19], {P(0)}, {P(0)}")
    for i in range(1, 9): e(f"v_pk_fma_f32 v[18:19], {P(i)}, {P(i)}, v[18:19]")
    e("v_add_f32 v18, v18, v19")
    fill = [f"v_cvt_pk_bf16_f32 v{xs[i]}, v{F+2*i}, v{F+2*i+1}\n" + unpack(i) for i in range(9)]
    tail = allred32(18, 19) + [f"v_mul_f32 v18, {f32(1 / 576)}, v18\nv_fma_f32 v18, -v23, v23, v18\nv_cvt_pk_bf16_f32 v18, v18, v18\nv_and_b32 v18, 0xffff0000, v18\nv_add_f32 v18, {f32(1e-5)}, v18\nv_cvt_pk_bf16_f32 v18, v18, v18\nv_and_b32 v18, 0xffff0000, v18\nv_sqrt_f32 v18, v18",
                               "v_cvt_pk_bf16_f32 v18, v18, v18\nv_and_b32 v18, 0xffff0000, v18\nv_rcp_f32 v18, v18"]
    E(weave(fill, tail))
    for i in range(9):
        e(f"v_pk_mul_f32 {P(i)}, {P(i)}, v[18:19] op_sel_hi:[1,0]\nv_cvt_pk_bf16_f32 v{xs[i]}, v{F+2*i}, v{F+2*i+1}")
    def xwrite(a):
        for i in range(0, 8, 2): e(f"ds_write2_b32 v{a}, v{xs[i]}, v{xs[i+1]} offset0:{i} offset1:{i+1}")
        e(f"ds_write_b32 v{a}, v{xs[8]} offset:32")
    xwrite(17)
    stamp(11)
    e(f"s_cmp_lg_u32 s51, 0\ns_cbranch_scc1 L_qv_ld\nv_add_u32 v19, 1152, v17")
    xwrite(19)
    e(f"v_add_u32 v17, {YN}, v16\ns_mov_b32 s51, 1\ns_branch L_ln_loop")

    e("L_qv2:")
    e.dsq = []
    vUK = 32
    e("s_lshl_b32 s50, s39, 20\ns_mov_b32 s51, s46")
    ukl = []
    for k in range(4):
        ukl += [f"s_mov_b32 m0, s51\ns_add_u32 s51, s51, 8192\nbuffer_load_dwordx4 v{vDQ}, s[12:15], s50 offen {ntuk} lds",
                f"buffer_load_dwordx4 v{vDQ+1}, s[12:15], s50 offen offset:1024 {ntuk} lds\ns_add_u32 s50, s50, 0x40000"]
    ukr = [f"ds_read_b128 v[{vUK+(ee*4+k)*4}:{vUK+(ee*4+k)*4+3}], v{vUKA + (k ^ (2 * ee))} offset:{2048 * ee}" for ee in range(2) for k in range(4)]
    HU2 = f"s_cmp_lg_u32 {sW}, 0\ns_cbranch_scc1 L_nohu2\ns_mov_b64 exec, 1\nbuffer_store_dword v80, v{vHU}, s[4:7], 0 offen sc1\ns_mov_b64 exec, -1\nL_nohu2:"
    def dq():
        return [f"s_mov_b32 m0, s47\ns_add_u32 s47, s47, 8192\nbuffer_load_dwordx4 v{vDQ}, s[8:11], s44 offen {nt} lds",
                f"buffer_load_dwordx4 v{vDQ+1}, s[8:11], s44 offen offset:1024 {nt} lds\ns_add_u32 s44, s44, 0x40000\ns_cmp_eq_u32 s44, {18 << 18}\ns_cselect_b32 s44, 0, s44"]
    stamp(1)
    aXN, aWQ = 0, 72
    rounds = [(0, 5, 8, dq() * 3), (5, 8, 8, ukl), (8, 12, 8, dq() * 6), (12, 15, 6, ukr), (15, 18, 0, [HU2] if hu2 == 4 else [])]
    e.auto = True
    for pi, (s0_, s1_, vm, side) in enumerate(rounds):
        e(f"s_waitcnt vmcnt({vm})" + (" lgkmcnt(0)" if pi == 0 else "") + "\ns_barrier")
        if pi in (0, 3, 4): stamp({0: 13, 3: 14, 4: 15}[pi])
        body = []
        def mm(t):
            return [mf(("v", 64 + 4 * c), ("a", aWQ + t * 8 + c * 4), ("a", aXN + 4 * t), None if t == 0 else ("v", 64 + 4 * c)) for c in range(2)]
        xr = lambda sg: f"ds_read2_b64 a[{aXN+4*sg}:{aXN+4*sg+3}], v{vXF} offset0:{8*sg} offset1:{8*sg+4}"
        for sg in range(s0_, s1_):
            if pi == 0: body.append(xr(sg))
            for c in range(2):
                for u in range(2):
                    r = aWQ + sg * 8 + c * 4 + u * 2
                    body.append(f"ds_read_b64_tr_b16 a[{r}:{r+1}], v{vQ0 + 2 * (sg >> 3) + c} offset:{(sg & 7) * 8192 + u * 1024}")
            if sg - s0_ >= 2: body += mm(sg - 2)
        if pi < 3: body += [xr(sg) for sg in {0: range(5, 9), 1: range(9, 14), 2: range(14, 18)}[pi]]
        body += mm(s1_ - 2) + mm(s1_ - 1)
        E(side[:2] + weave(body, side[2:], every=2))
    stamp(2)
    e(f"""v_cvt_pk_bf16_f32 v72, v64, v65
          v_cvt_pk_bf16_f32 v73, v66, v67
          v_cvt_pk_bf16_f32 v74, v68, v69
          v_cvt_pk_bf16_f32 v75, v70, v71
          ds_write2_b64 v{vQW}, v[72:73], v[74:75] offset1:4
          s_waitcnt lgkmcnt(0)
          s_barrier""")
    for k in range(4): e(f"ds_read_b128 v[{88+4*k}:{91+4*k}], v{vQR} offset:{64 * k}")
    e(f"s_mov_b32 s50, {f32(128 ** -0.5 * math.log2(math.e))}")
    if hu2 == 5: e(HU2)
    for k in range(4):
        for ee in range(2):
            e(mf(("v", 64 + 4 * ee), ("v", vUK + (ee * 4 + k) * 4), ("v", 88 + 4 * k), None if k == 0 else ("v", 64 + 4 * ee)))
    e.auto = False
    e(f"""s_mov_b32 exec_lo, 0x00030003
          s_mov_b32 exec_hi, 0x00030003
          s_lshl_b32 s44, s39, 20
          s_add_u32 s47, s46, {R2}""")
    for ee in range(2):
        for i in range(4): e(f"v_mul_f32 v{64+4*ee+i}, s50, v{64+4*ee+i}")
        for i in range(2): e(f"v_cvt_pk_bf16_f32 v{82+2*ee+i}, v{64+4*ee+2*i}, v{65+4*ee+2*i}")
        e(f"buffer_store_dwordx4 v[{80+4*ee}:{83+4*ee}], v{vQS}, s[4:7], 0 offen offset:{1024*ee} sc1")
    e("s_mov_b64 exec, -1")
    if hu2 == 6: e(HU2)
    stamp(3)
    for k in range(4):
        e(f"""s_mov_b32 m0, s47
              s_add_u32 s47, s47, 8192
              buffer_load_dwordx4 v{vDQ}, s[20:23], s44 offen {ntv} lds
              buffer_load_dwordx4 v{vDQ+1}, s[20:23], s44 offen offset:1024 {ntv} lds
              s_add_u32 s44, s44, 0x40000""")
    e(f"""s_mul_i32 s44, {sU}, {36 * 9216}
          s_mul_i32 s50, {sX}, 1152
          s_add_u32 s44, s44, s50
          s_mul_i32 s49, {sW}, 9216
          s_mul_i32 s53, s38, 147456
          s_add_u32 s53, s53, s49
          s_add_u32 s45, s44, {4 * 73728}
          s_lshl3_add_u32 s44, s49, s44
          s_add_u32 s47, s49, {R3}""")
    E(dma9(vW1, 24, "s44", "s47"))
    e(f"""s_cmp_lg_u32 {sW}, 0
          s_cbranch_scc1 L_qv_nx1
          s_mov_b32 s47, {R3 + 4 * 9216}""")
    E(dma9(vW1, 24, "s45", "s47", 5))
    e("L_qv_nx1:")
    def wo_dma(sg, reg):
        d = dma9(vL, 16, "s44", "s47", fl=nt)
        d[0] = f"s_xor_b32 s52, s39, {sg}\ns_mul_i32 s52, s52, 36864\ns_add_u32 s44, s53, s52\ns_add_u32 s47, s49, {reg}\n" + d[0]
        return d
    def wo_frag(sg, t):
        return ("a", 32 + 4 * (sg * 9 + t))
    def wo_read(sg):
        base, off = (vT, sg * 36864) if sg < 2 else (vT2, (sg - 2) * 36864)
        out = []
        for t in range(9):
            f, r = wo_frag(sg, t)
            for u in range(2):
                out.append(f"ds_read_b64_tr_b16 {f}[{r+2*u}:{r+2*u+1}], v{base + (t & 3)} offset:{off + u * 18432 + (t >> 2) * 128}")
        return out
    e("s_waitcnt vmcnt(9)\ns_barrier")
    uv = [f"ds_read_b64_tr_b16 a[{(k*2+c)*4+2*u}:{(k*2+c)*4+2*u+1}], v{vQ0+2+c} offset:{R2 - 0x10000 + k * 8192 + u * 1024}" for k in range(4) for c in range(2) for u in range(2)]
    E(weave(uv, wo_dma(0, R0), every=2))
    e("s_waitcnt vmcnt(9) lgkmcnt(0)\ns_barrier")
    gemv36(vT2, R3 - R2, vT16, vY, vY16, 64, 120, 160, vHM, 2048, side=wo_dma(1, R1))
    stamp(4)
    E(wo_dma(2, R2))
    e("s_waitcnt vmcnt(21)\ns_barrier")
    E(weave(wo_read(0), wo_dma(3, R3), every=2))
    e("s_waitcnt vmcnt(18)\ns_barrier"); E(wo_read(1))
    e("s_waitcnt vmcnt(9)\ns_barrier"); E(wo_read(2))
    e("s_waitcnt vmcnt(0)\ns_barrier"); E(wo_read(3))
    stamp(5)
    G, GR, WW = 64, 92, 104
    e(f"""s_mov_b32 s54, 0
          v_mov_b32 v{GR+3}, {sT}
          v_mov_b32 v{GR+7}, {sT}
          v_mov_b32 v{GR+11}, {sT}
          L_hu3:
          buffer_load_dwordx4 v[16:19], v{vFL}, s[4:7], 0 offen sc1
          s_add_u32 s54, s54, 1
          s_cmp_gt_u32 s54, {SPIN}
          s_waitcnt vmcnt(0)
          s_cbranch_scc1 L_h3
          v_cmp_ne_u64 vcc, {TP}, v[18:19]
          s_cbranch_vccnz L_hu3
          L_h3:""")
    for i in range(4): e(f"buffer_load_dwordx4 v[{G+4*i}:{G+4*i+3}], v{vH3}, s[4:7], 0 offen offset:{1024 * i} sc1")
    stamp(6)
    e("v_mov_b32 v24, v16")
    for s_ in (8, 4, 2, 1): e(f"v_max_f32_dpp v24, v24, v24 row_ror:{s_} row_mask:0xf bank_mask:0xf")
    e("""v_mov_b32 v25, v24
         v_permlane16_swap_b32 v24, v25
         v_max_f32 v24, v24, v25
         v_sub_f32 v24, v16, v24
         v_exp_f32 v24, v24
         v_mul_f32 v25, v24, v17""")
    E(allred32(25, 26))
    e(f"v_rcp_f32 v25, v25\nv_mul_f32 v24, v24, v25\nv_cvt_pk_bf16_f32 v24, v24, v24\ns_waitcnt lgkmcnt(0)")
    e.auto = True
    for i in range(4): e(f"ds_bpermute_b32 v{28+i}, v{vBP}, v24 offset:{16 * i}")
    for i in range(4):
        for j in range(4): e(f"v_and_b32 v{WW+4*i+j}, v{28+i}, v{vMK+j}")
    for i in range(4):
        e(f"s_waitcnt vmcnt({3 - i})")
        if i == 3: stamp(8)
        e(mf(("v", 120), ("v", G + 4 * i), ("v", WW + 4 * i), None if i == 0 else ("v", 120)))
    e(f"""s_mov_b32 exec_lo, 0x00ff00ff
          s_mov_b32 exec_hi, 0x00ff00ff
          v_cvt_pk_bf16_f32 v124, v120, v121
          v_cvt_pk_bf16_f32 v125, v122, v123
          ds_write_b64 v{vLW}, v[124:125]
          s_mov_b64 exec, -1
          s_waitcnt lgkmcnt(0)
          s_barrier""")
    for k in range(4): e(f"ds_read2_b64 v[{WW+4*k}:{WW+4*k+3}], v{vLR} offset0:{8*k} offset1:{8*k+4}")
    for k in range(4):
        for c in range(2): e(mf(("v", 128 + 4 * c), ("a", (k * 2 + c) * 4), ("v", WW + 4 * k), None if k == 0 else ("v", 128 + 4 * c)))
    e(f"""v_cvt_pk_bf16_f32 v136, v128, v129
          v_cvt_pk_bf16_f32 v137, v130, v131
          v_cvt_pk_bf16_f32 v138, v132, v133
          v_cvt_pk_bf16_f32 v139, v134, v135
          ds_write2_b64 v{vCW}, v[136:137], v[138:139] offset1:4
          s_waitcnt lgkmcnt(0)
          s_barrier""")
    stamp(10)
    CA, D3 = 64, 144
    for sg in range(4): e(f"ds_read2_b64 v[{CA+4*sg}:{CA+4*sg+3}], v{vCR} offset0:{8*sg} offset1:{8*sg+4}")
    e("s_mov_b32 s50, 0x10000\ns_mov_b32 s51, 0x20000\ns_mov_b32 exec_hi, 0")
    e.auto = True
    def emit_out(a):
        for t in range(3):
            r = D3 + 4 * (3 * a + t)
            e(f"v_add_f32 v{GR+4*a+t}, v{r}, v{r+1}")
        e(f"buffer_store_dwordx4 v[{GR+4*a}:{GR+4*a+3}], v{vS5}, s[4:7], {'0' if a == 0 else f's{49+a}'} offen sc1")
    for t in range(9):
        for sg in range(4):
            e(mf(("v", D3 + 4 * t), ("v", CA + 4 * sg), wo_frag(sg, t), None if sg == 0 else ("v", D3 + 4 * t)))
        if t in (4, 7): emit_out((t - 2) // 3)
    emit_out(2)
    e.auto = False
    e("s_mov_b32 exec_hi, -1")
    stamp(7)
    e("s_branch L_fin")

    e("L_kv2:")
    e.dsq = []
    vQK, vPV = 24, 28
    vQL, vXW, vMW, vMR, vRS, vFS, vQWr, vPWr = 44, 45, 46, 47, 48, 49, 50, 51
    vHQ, vT0, vQRd = 248, 249, 251
    QF, QS, T2, O, P_, S, REC = 64, 128, 160, 160, 192, 224, 128
    e(f"""s_load_dwordx2 s[16:17], s[0:1], 72
          s_load_dwordx2 s[20:21], s[0:1], 64
          s_load_dwordx2 s[24:25], s[0:1], 80
          s_load_dwordx2 s[40:41], s[0:1], 88
          v_and_b32 v4, 15, v1                    ; rho
          v_lshrrev_b32 v52, 3, v4
          v_lshlrev_b32 v7, 2, v52
          v_xor_b32 v7, v7, v4
          v_and_b32 v7, 7, v7
          v_lshl_or_b32 v7, v7, 1, v52            ; f(rho)
          v_xor_b32 v7, v7, v2
          v_lshlrev_b32 v7, 4, v7
          v_lshl_add_u32 v7, v4, 10, v7
          v_add_u32 v{vQK}, s46, v7""")
    for m in range(1, 4): e(f"v_xor_b32 v{vQK+m}, {64 * m}, v{vQK}")
    e(f"""v_lshrrev_b32 v53, 2, v1                ; key = 4g+r
          v_lshrrev_b32 v52, 5, v1
          v_lshlrev_b32 v7, 2, v52
          v_xor_b32 v7, v7, v53
          v_and_b32 v7, 7, v7
          v_lshl_or_b32 v7, v7, 1, v52            ; f(key)
          v_lshlrev_b32 v7, 1, v7
          v_and_b32 v52, 3, v1
          v_xor_b32 v7, v7, v52
          v_lshlrev_b32 v7, 3, v7
          v_lshl_add_u32 v7, v53, 10, v7
          s_lshl_b32 s50, {sW}, 8
          v_add_u32 v{vPV}, s50, v7""")
    for ct in range(1, 8): e(f"v_xor_b32 v{vPV+ct}, {32 * ct}, v{vPV}")
    for ct in range(8): e(f"v_add_u32 v{vPV+8+ct}, 0x10000, v{vPV+ct}")
    e(f"""v_lshrrev_b32 v52, 2, v4
          v_lshlrev_b32 v52, 1, v52
          s_movk_i32 s51, 0x78
          v_bfe_u32 v52, s51, v52, 2
          v_xor_b32 v52, v52, v2
          v_lshlrev_b32 v52, 4, v52
          v_lshl_add_u32 v52, v4, 6, v52
          v_add_u32 v{vQRd}, {QX}, v52
          v_lshlrev_b32 v52, 1, v2
          v_bfe_u32 v52, s51, v52, 2
          v_lshlrev_b32 v52, 4, v52
          v_xor_b32 v52, v52, v3
          s_lshl_b32 s50, {sW}, 12
          s_add_u32 s50, s50, {QX}
          v_add_u32 v{vQWr}, s50, v52
          s_lshr_b32 s50, s48, 5
          s_lshl1_add_u32 s50, s50, s49
          s_lshl2_add_u32 s50, s50, {sW}
          s_lshl_b32 s50, s50, 13
          s_add_u32 s50, s50, {WS_Q}
          v_add_u32 v{vQL}, s50, v3
          v_add_u32 v{vXW}, {QX}, v3
          v_lshlrev_b32 v52, 4, v4
          v_add_u32 v{vMR}, {MX}, v52
          s_lshl_b32 s50, {sW}, 2
          v_add_u32 v{vMW}, s50, v{vMR}
          s_lshl2_add_u32 s51, s49, {sW}
          s_lshl_b32 s51, s51, 6
          s_add_u32 s51, s51, s48
          s_lshl_b32 s51, s51, 8
          s_add_u32 s51, s51, {WS_HU3}
          v_add_u32 v{vFS}, s51, v52
          s_lshl_b32 s50, s49, 6
          v_lshl_add_u32 v52, v2, 18, v52
          s_add_u32 s50, s50, {sW}
          s_lshl_b32 s50, s50, 6
          s_add_u32 s50, s50, s48
          s_lshl_b32 s50, s50, 8
          s_add_u32 s50, s50, {WS_H3}
          v_add_u32 v{vRS}, s50, v52
          s_lshl2_add_u32 s50, s49, {sW}
          s_lshl_b32 s50, s50, 13
          s_add_u32 s50, s50, {WS_HU2}
          v_lshl_add_u32 v{vHQ}, v4, 9, s50
          s_lshr_b32 s50, {sU}, 2
          s_mul_i32 s50, s50, 144
          s_mul_i32 s51, {sX}, 576
          s_add_u32 s50, s50, s51
          s_lshl2_add_u32 s58, s39, s50
          s_mul_i32 s59, s58, 1152
          s_movk_i32 s50, {18432 - 4608}
          v_mul_u32_u24 v52, 1821, v0
          v_lshrrev_b32 v52, 16, v52              ; tid / 36
          v_lshlrev_b32 v53, 7, v0
          v_mad_u32_u24 v{vT0}, v52, s50, v53
          v_min_u32 v53, 67, v0
          v_add_u32 v53, 256, v53
          v_mul_u32_u24 v52, 1821, v53
          v_lshrrev_b32 v52, 16, v52
          v_lshlrev_b32 v53, 7, v53
          v_mad_u32_u24 v{vT0+1}, v52, s50, v53
          s_lshl_b32 s51, {sW}, 10
          v_add_u32 v{vPWr}, s51, v{vXW}
          s_xor_b32 s45, s44, 0x20000""")
    srd(4, WS_BYTES); srd(28, 2304); srd(16, 4608 * 1152); srd(20, 9216); srd(24, 1152); srd(40, 2304)
    e("s_waitcnt lgkmcnt(0)")
    make_tag()
    if tlb:
        e(f"""s_load_dword s62, s[16:17], s59
              s_add_u32 s50, s59, {9 * 18432 - 13824 - 4}
              s_load_dword s62, s[16:17], s50
              s_load_dword s62, s[20:21], 0
              s_load_dword s62, s[24:25], 0
              s_load_dword s62, s[40:41], 0""")
    E(s0[NEARLY:])
    e("s_add_u32 s44, s44, 0x10000")
    E(slot_dma("s44", "s_add_u32 m0, s46, 0x4000"))
    stamp(1)
    def qk_reads(f, r0, sp):
        return [f"ds_read_b128 {f}[{r0+4*k}:{r0+4*k+3}], v{vQK + (k & 3)} offset:{sp * 16384 + (k >> 2) * 256}" for k in range(16)]
    def pv_read(base, k, ct, sp):
        r = base + (k * 8 + ct) * 4 + 2 * sp
        return f"ds_read_b64_tr_b16 a[{r}:{r+1}], v{vPV + ct + 8 * (k >> 1)} offset:{(k & 1) * 32768 + sp * 16384}"
    def frags(sp):
        return qk_reads("a", sp * 64, sp) + [pv_read(128, k, ct, sp) for k in range(4) for ct in range(8)]
    def qloads():
        for i in range(8):
            e(f"buffer_load_dwordx4 v[{QS+4*i}:{QS+4*i+3}], v{vQL}, s[4:7], {'s55' if i >= 4 else '0'} offen offset:{(i & 3) * 1024} sc1")
    def qcheck():
        for t in range(4):
            r = QS + 8 * t
            e(f"v_bitop3_b32 v{52+2*t}, v{r}, v{r+6}, s36 bitop3:0x7e\nv_bitop3_b32 v{53+2*t}, v{r+1}, v{r+7}, s37 bitop3:0x7e")
        e("""v_or3_b32 v52, v52, v53, v54
             v_or3_b32 v55, v55, v56, v57
             v_or3_b32 v52, v52, v58, v59
             v_or_b32 v52, v52, v55
             v_cmp_ne_u32 vcc, 0, v52""")
    e("s_movk_i32 s55, 4096\ns_waitcnt vmcnt(16)\ns_barrier")
    E(frags(0))
    e("s_waitcnt lgkmcnt(0)\ns_barrier")
    stamp(2)
    s2 = slot_dma("s45", "s_mov_b32 m0, s46", nt2)
    hup = f"buffer_load_dword v62, v{vHQ}, s[4:7], 0 offen sc1"
    def try_q(tag):
        e(f"v_cmp_ne_u32 vcc, {sT}, v62\ns_cbranch_vccnz L_tq{tag}a")
        qloads()
        e(f"s_mov_b32 s57, 1\ns_branch L_tq{tag}b\nL_tq{tag}a:\n{hup}\nL_tq{tag}b:")
    E(s2[:8] + [hup])
    e("s_mov_b32 s57, 0\ns_waitcnt vmcnt(9)\ns_barrier")
    stamp(14)
    E(weave(frags(1), s2[8:], every=5))
    e("s_waitcnt vmcnt(8)")
    try_q(1)
    e("s_add_u32 s45, s45, 0x10000\ns_waitcnt lgkmcnt(0)\ns_barrier")
    stamp(3)
    s3 = slot_dma("s45", "s_add_u32 m0, s46, 0x4000", nt2)
    E(s3[:8])
    e("s_cmp_lg_u32 s57, 0\ns_cbranch_scc1 L_tq2b\ns_waitcnt vmcnt(8)")
    try_q(2)
    E(s3[8:])
    qw = [f"ds_write_b128 v{vQWr}, v[{QS+8*t+2}:{QS+8*t+5}] offset:{1024 * t}" for t in range(4)]
    qr = [f"ds_read_b128 v[{QF+4*k}:{QF+4*k+3}], v{vQRd} offset:{1024 * k}" for k in range(16)]
    e(f"""s_mov_b32 s54, 0
          s_cmp_lg_u32 s57, 0
          s_waitcnt vmcnt(8)
          s_cbranch_scc1 L_q_chk
          L_hu2:
          v_cmp_ne_u32 vcc, {sT}, v62
          s_cbranch_vccz L_q_retry
          {hup}
          s_add_u32 s54, s54, 1
          s_cmp_le_u32 s54, {SPIN}
          s_waitcnt vmcnt(0)
          s_cbranch_scc1 L_hu2
          L_q_retry:""")
    qloads()
    e(f"s_add_u32 s54, s54, 1\ns_cmp_gt_u32 s54, {SPIN}\ns_waitcnt vmcnt(0)\ns_cbranch_scc1 L_q_ok\nL_q_chk:")
    qcheck()
    e("s_and_b64 exec, exec, vcc\ns_cbranch_execnz L_q_retry\nL_q_ok:\ns_mov_b64 exec, -1")
    E(qw)
    e("s_waitcnt lgkmcnt(0)\ns_barrier")
    stamp(4)
    e.dsq = []; e.auto = True
    E(qr[:8])
    def tile(sr, f, r0): return [mf(("v", sr), (f, r0 + 4 * k), ("v", QF + 4 * k), None if k == 0 else ("v", sr)) for k in range(16)]
    E(weave(tile(S, "a", 0), qr[8:] + qk_reads("v", T2, 0)[:8]))
    E(weave(tile(S + 4, "a", 64), qk_reads("v", T2, 0)[8:]))
    e("s_waitcnt vmcnt(0)")
    stamp(11)
    if w2touch: e(f"buffer_load_dword v62, v{vT0}, s[16:19], s59 offen\nbuffer_load_dword v63, v{vT0+1}, s[16:19], s59 offen")
    early = [pv_read(0, k, ct, 0) for k in (2, 3) for ct in range(8)]
    E(weave(tile(S + 8, "v", T2), qk_reads("a", 0, 1)))
    mx = [f"v_max3_f32 v55, v{S}, v{S+1}, v{S+2}", f"v_max3_f32 v55, v55, v{S+3}, v{S+4}", f"v_max3_f32 v55, v55, v{S+5}, v{S+6}",
          f"v_max3_f32 v55, v55, v{S+7}, v{S+8}", f"v_max3_f32 v55, v55, v{S+9}, v{S+10}", f"v_max_f32 v55, v55, v{S+11}"]
    E(weave(weave(tile(S + 12, "a", 0), early), mx, start=16, every=2))
    stamp(12)
    e(f"""v_max3_f32 v55, v55, v{S+12}, v{S+13}
          v_max3_f32 v55, v55, v{S+14}, v{S+15}
          v_mov_b32 v56, v55
          v_permlane32_swap_b32 v55, v56
          v_max_f32 v55, v55, v56
          v_mov_b32 v56, v55
          v_permlane16_swap_b32 v55, v56
          v_max_f32 v55, v55, v56
          ds_write_b32 v{vMW}, v55
          s_waitcnt lgkmcnt(0)
          s_barrier
          ds_read_b128 v[56:59], v{vMR}
          v_max3_f32 v60, v56, v57, v58
          v_max_f32 v60, v60, v59""")
    for hf in range(2):
        for i in range(4): e(f"v_pk_add_f32 v[{S+8*hf+2*i}:{S+8*hf+2*i+1}], v[{S+8*hf+2*i}:{S+8*hf+2*i+1}], v[60:61] op_sel_hi:[1,0] neg_lo:[0,1] neg_hi:[0,1]")
        for i in range(8): e(f"v_exp_f32 v{S+8*hf+i}, v{S+8*hf+i}")
        for i in range(4): e(f"v_cvt_pk_bf16_f32 v{240+4*hf+i}, v{S+8*hf+2*i}, v{S+8*hf+2*i+1}")
        e(f"ds_write_b128 v{vPWr}, v[{240+4*hf}:{243+4*hf}] offset:{PX - QX + 4096 * hf}")
    e("s_waitcnt lgkmcnt(0)\ns_barrier")
    for k in range(8): e(f"ds_read_b128 v[{P_+4*k}:{P_+4*k+3}], v{vXW} offset:{PX - QX + 1024 * k}")
    stamp(13)
    late = []
    for ct in range(8):
        late += [pv_read(0, 0, ct, 0), pv_read(0, 0, ct, 1), pv_read(0, 1, ct, 0), pv_read(0, 1, ct, 1), pv_read(0, 2, ct, 1), pv_read(0, 3, ct, 1)]
    pv0 = [mf(("v", O + 4 * ct), ("v", P_ + 4 * k), ("a", 128 + (k * 8 + ct) * 4), None if k == 0 else ("v", O + 4 * ct)) for k in range(4) for ct in range(8)]
    pv1 = [mf(("v", O + 4 * ct), ("v", P_ + 16 + 4 * k), ("a", (k * 8 + ct) * 4), ("v", O + 4 * ct)) for ct in range(8) for k in range(4)]
    def rst(r): return f"buffer_store_dwordx4 v[{REC+4*r}:{REC+4*r+3}], v{vRS}, s[4:7], {('0', 's56', 's57', 's52')[r]} offen sc1"
    def epi(j): return [f"v_cvt_pk_bf16_f32 v{REC+4*r+j}, v{O+8*j+r}, v{O+8*j+4+r}" for r in range(4)]
    e("s_mov_b32 s56, 0x10000\ns_mov_b32 s57, 0x20000\ns_mov_b32 s52, 0x30000")
    e(f"v_mov_b32 v52, 0x3f803f80\nv_mov_b32 v53, v52\nv_mov_b32 v54, v52\nv_mov_b32 v55, v52")
    lm = [mf(("v", 56), ("v", 52), ("v", P_ + 4 * k), None if k == 0 else ("v", 56)) for k in range(8)]
    E(weave(pv0 + pv1[:16], late))
    E(weave(pv1[16:32], epi(0) + epi(1), every=2))
    E(weave(lm[:2], epi(2), per=2))
    for r in range(4): E([epi(3)[r], rst(r)])
    stamp(5)
    E(lm[2:])
    e.auto = False
    vW2, vTk, vT16k, vM5, vHA, vHA16 = 8, 18, 22, 26, 27, 28
    d9_addrs(None, vW2, 18432 - 4608, 2, 64)
    e(f"""s_add_u32 s45, s59, {4 * 36864}
          s_mul_i32 s47, {sW}, 9216
          s_lshl2_add_u32 s44, s47, s59
          s_lshl4_add_u32 s50, {sX}, {sU}
          s_mul_i32 s50, s50, 3
          s_add_u32 s50, s50, {sW}
          s_lshl_b32 s50, s50, 11
          s_add_u32 s59, s50, {WS_HM}
          v_and_b32 v29, 3, v1
          v_lshl_add_u32 v30, v2, 4, v29          ; 16g+e
          s_mul_i32 s50, {sW}, 48
          s_add_u32 s50, s50, s58
          v_add_lshl_u32 v31, v30, s50, 1""")
    if True:
        e(f"""v_mov_b32 v{REC+20}, v60
              v_mov_b32 v{REC+21}, v56
              v_mov_b32 v{REC+22}, s36
              v_mov_b32 v{REC+23}, s37
              s_mov_b64 exec, 0xffff
              s_waitcnt vmcnt(0)
              buffer_store_dwordx4 v[{REC+20}:{REC+23}], v{vFS}, s[4:7], 0 offen sc1
              s_mov_b64 exec, -1""")
    stamp(6)
    e("s_barrier")
    e(f"""s_cmp_eq_u32 {sW}, 3
          s_cbranch_scc1 L_kv_w3
          buffer_load_ushort v32, v31, s[20:23], 0 offen
          buffer_load_dwordx4 v[64:67], v3, s[4:7], s59 offen sc1
          buffer_load_dwordx4 v[68:71], v3, s[4:7], s59 offen offset:1024 sc1
          s_branch L_kv_nx2
          L_kv_w3:
          s_mov_b32 s50, {4 * 9216}""")
    E(dma9(vW2, 16, "s45", "s50", 5))
    e("L_kv_nx2:")
    E(dma9(vW2, 16, "s44", "s47"))
    e(f"""s_mul_i32 s44, {sX}, 12
          s_add_u32 s44, s44, {sU}                ; r
          s_lshr_b32 s50, s44, 3
          s_mul_i32 s50, s50, 48
          s_and_b32 s51, s44, 3
          s_lshl2_add_u32 s50, s51, s50
          v_add_lshl_u32 v33, v30, s50, 1
          s_bfe_u32 s51, s44, 0x10002
          s_mul_i32 s48, s51, 1152
          v_lshlrev_b32 v34, 4, v0
          s_lshl_b32 s45, s44, 13
          s_add_u32 s46, s45, {WS_H5M}
          s_add_u32 s47, s46, 4096
          v_lshl_add_u32 v35, v2, 2, v29
          v_lshlrev_b32 v35, 4, v35
          v_add_u32 v35, {FX}, v35
          s_lshl_b32 s50, {sW}, 2
          v_add_u32 v36, s50, v35""")
    t9_addrs(vTk, vT16k, 0, 72)
    h5_store_addr(vM5, WS_H5M, 72)
    e(f"""v_and_b32 v37, 4, v1
          v_lshlrev_b32 v38, 5, v37
          v_add_u32 v{vHA16}, {HX}, v38
          v_lshl_add_u32 v{vHA}, v2, 3, v{vHA16}
          s_cmp_eq_u32 {sW}, 3
          s_cbranch_scc1 L_kv_nx3
          s_mov_b32 s54, 0
          s_waitcnt vmcnt(9)
          L_hm:
          v_bitop3_b32 v39, v67, v71, {sT} bitop3:0x7e
          v_cmp_ne_u32 vcc, 0, v39
          s_cbranch_vccz L_hm_done
          buffer_load_dwordx4 v[64:67], v3, s[4:7], s59 offen sc1
          buffer_load_dwordx4 v[68:71], v3, s[4:7], s59 offen offset:1024 sc1
          s_add_u32 s54, s54, 1
          s_cmp_le_u32 s54, {SPIN}
          s_waitcnt vmcnt(0)
          s_cbranch_scc1 L_hm
          L_hm_done:""")
    red16(64); red16(68)
    c1 = -2 * math.sqrt(2 / math.pi) * math.log2(math.e)
    e(f"""v_cmp_ne_u32 vcc, 0, v37
          v_lshlrev_b32 v32, 16, v32
          v_cndmask_b32 v64, v64, v68, vcc""")
    rbf("v64", "v64")
    e("v_add_f32 v64, v64, v32")
    rbf("v64", "v64")
    e(f"""v_mul_f32 v65, v64, v64
          v_mov_b32 v66, {f32(c1)}
          v_fmac_f32 v66, {f32(c1 * 0.044715)}, v65
          v_mul_f32 v65, v66, v64
          v_exp_f32 v65, v65
          v_add_f32 v65, 1.0, v65
          v_rcp_f32 v65, v65
          v_mul_f32 v64, v64, v65
          v_cvt_pk_bf16_f32 v64, v64, v64
          v_lshl_add_u32 v39, v29, 1, v{vHA}
          s_mul_i32 s50, {sW}, 24
          v_add_u32 v39, s50, v39
          s_mov_b32 exec_hi, 0xffff
          ds_write_b16 v39, v64
          s_mov_b32 exec_hi, -1
          L_kv_nx3:""")
    e(f"""s_cmp_ge_u32 {sU}, 12
          s_cbranch_scc1 L_kv_nx4
          buffer_load_ushort v40, v33, s[24:27], 0 offen
          buffer_load_ushort v41, v33, s[28:31], s48 offen""")
    if pretouch:
        e(f"""s_add_u32 s50, s45, {WS_H5S}
              v_lshlrev_b32 v42, 5, v0
              buffer_load_dword v43, v42, s[4:7], s50 offen sc1""")
    e(f"""s_waitcnt vmcnt({3 if pretouch else 2})
          s_branch L_kv_nx5
          L_kv_nx4:
          s_waitcnt vmcnt(0)
          L_kv_nx5:
          s_waitcnt lgkmcnt(0)
          s_barrier""")
    e.dsq = []
    stamp(15)
    gemv36(vTk, 0, vT16k, vHA, vHA16, 64, 120, 160, vM5, 65536)
    stamp(7)
    e(f"""s_cmp_ge_u32 {sU}, 12
          s_cbranch_scc1 L_fin
          s_mov_b32 s57, 0
          s_waitcnt vmcnt(0)
          L_f_loop:
          s_mov_b32 s54, 0
          L_f_poll:
          buffer_load_dwordx4 v[64:67], v34, s[4:7], s46 offen sc1
          buffer_load_dwordx4 v[68:71], v34, s[4:7], s47 offen sc1
          s_add_u32 s54, s54, 1
          s_cmp_gt_u32 s54, {SPIN}
          s_waitcnt vmcnt(0)
          s_cbranch_scc1 L_f_done
          v_bitop3_b32 v63, v67, v71, {sT} bitop3:0x7e
          v_cmp_ne_u32 vcc, 0, v63
          s_and_b64 exec, exec, vcc
          s_cbranch_execnz L_f_poll
          L_f_done:
          s_mov_b64 exec, -1
          v_add_f32 v64, v64, v68
          v_add_f32 v65, v65, v69
          v_add_f32 v66, v66, v70""")
    red16(64)
    e(f"""ds_write_b32 v36, v64
          s_waitcnt lgkmcnt(0)
          s_barrier
          ds_read_b128 v[64:67], v35
          s_cmp_lg_u32 s57, 0
          s_waitcnt lgkmcnt(0)
          v_add_f32 v64, v64, v65
          v_add_f32 v66, v66, v67
          v_add_f32 v64, v64, v66""")
    rbf("v64", "v64")
    e(f"""s_cbranch_scc1 L_f_out
          v_lshlrev_b32 v40, 16, v40
          v_add_f32 v64, v64, v40""")
    rbf("v64", "v64")
    e(f"""v_mul_f32 v65, {f32(-math.log2(math.e))}, v64
          v_exp_f32 v65, v65
          v_add_f32 v65, 1.0, v65
          v_rcp_f32 v65, v65
          v_mul_f32 v40, v64, v65""")
    rbf("v40", "v40")
    e(f"""v_lshlrev_b32 v41, 16, v41
          v_add_u32 v35, 256, v35
          v_add_u32 v36, 256, v36
          s_add_u32 s46, s45, {WS_H5S}
          s_add_u32 s47, s46, 4096
          s_mov_b32 s57, 1""")
    stamp(8)
    e(f"""s_branch L_f_loop
          L_f_out:
          v_mul_f32 v64, v64, v40""")
    rbf("v64", "v64")
    e(f"""v_add_f32 v64, v41, v64
          v_cvt_pk_bf16_f32 v64, v64, v64
          s_cmp_lg_u32 {sW}, 0
          s_cbranch_scc1 L_fin
          s_mov_b32 exec_lo, 0x000f000f
          s_mov_b32 exec_hi, 0x0000000f
          buffer_store_short v64, v33, s[40:43], s48 offen
          s_cmp_lg_u32 s44, 0
          s_cbranch_scc1 L_fin
          s_mov_b64 exec, 1
          v_mov_b32 v65, {sT}
          v_mov_b32 v66, {WS_EPOCH}
          buffer_store_dword v65, v66, s[4:7], 0 offen""")
    e("L_fin:")
    if pad:
        role, k = pad
        if role == 3:
            e(f"s_cmp_lg_u32 {sX}, {k - 100}\ns_cbranch_scc1 L_end")
            k = 0
        e(f"""s_waitcnt lgkmcnt(0)
              s_bfe_u32 s50, s2, 0x10003
              s_cmp_eq_u32 s50, {role}
              s_cselect_b32 s50, s{64 + 2 * k}, s64
              s_add_u32 s50, s50, 4000
              s_mov_b32 s54, 0
              L_pad:
              s_add_u32 s54, s54, 1
              s_cmp_gt_u32 s54, 100000
              s_cbranch_scc1 L_end
              s_memrealtime s[52:53]
              s_waitcnt lgkmcnt(0)
              s_sub_u32 s51, s52, s50
              s_cmp_lt_i32 s51, 0
              s_cbranch_scc1 L_pad""")
    if stamps:
        stamp(9)
        e("s_mov_b64 exec, -1\ns_waitcnt lgkmcnt(0)")
        for k in range(16): e(f"v_mov_b32 v{64+k}, s{64 + 2 * k}")
        e(f"""s_lshl2_add_u32 s50, s2, {sW}
              s_lshl_b32 s50, s50, 6
              s_add_u32 s50, s50, {STAMP_OFF}
              v_mov_b32 v63, 0
              s_mov_b64 exec, 1
              buffer_store_dwordx4 v[64:67], v63, s[4:7], s50 offen
              buffer_store_dwordx4 v[68:71], v63, s[4:7], s50 offen offset:16
              buffer_store_dwordx4 v[72:75], v63, s[4:7], s50 offen offset:32
              buffer_store_dwordx4 v[76:79], v63, s[4:7], s50 offen offset:48""")
    e("L_end:\ns_endpgm")
    head = f"""; Persistent single-launch kernel: absorbed-MLA decode attention + channel MLP (generated by gen/gen5.py)
; @launch grid=(256,1,1) block=(256,1,1) lds=163840
.amdgcn_target "amdgcn-amd-amdhsa--gfx950"
.text
.globl {K}
.p2align 8
.type {K},@function
"""
    tail = f""".section .rodata,"a"
.p2align 6
.amdhsa_kernel {K}
  .amdhsa_next_free_vgpr 512
  .amdhsa_next_free_sgpr 96
  .amdhsa_accum_offset 256
  .amdhsa_group_segment_fixed_size 0
  .amdhsa_kernarg_size 112
  .amdhsa_user_sgpr_count 2
  .amdhsa_user_sgpr_kernarg_segment_ptr 1
  .amdhsa_system_sgpr_workgroup_id_x 1
.end_amdhsa_kernel
"""
    return head + e.text() + tail

if __name__ == "__main__":
    out = sys.argv[1]
    kw = {}
    for a in sys.argv[2:]:
        k, v = a.split("=", 1)
        kw[k] = eval(v)
    open(out, "w").write(gen(**kw))
```

```python
import sys, math, struct
from asmlib import Asm, weave

NAME = "recurrent_scan__compressed_kv_cla__mixer_channel_mlp__decode"
K = NAME + "_kernel"
WS_BYTES = 268435456
SPIN = 1 << 17
def f32(x): return "0x%08x" % struct.unpack("<I", struct.pack("<f", x))[0]

def gen(stamps=False, wsb=0, pad=None, codepf=True, pretouch=True, only=None, skew=0, cyc=False,
        ntc="", ntv="nt", nt2="nt", ntuk="nt", ntq="nt", nt9="", qpos=1, n0=4, n1=9, w2a=0, early=False, ntb="nt", tpos=1, w1pre=True, uv0=3, gvd=True):
    WS_EPOCH = wsb
    WS_Q = wsb + 4096
    WS_FL = wsb + 0x40000
    WS_H3 = wsb + 0x60000
    WS_HM = WS_H3 + 128 * 32768
    WS_H5M = WS_HM + 128 * 6144
    WS_H5S = WS_H5M + 96 * 8192
    QX, PX, MX, HX, FX = 131072, 147456, 151552, 151808, 152064
    XN, YN, QQ, CX, CL = 152576, 157200, 159520, 160160, 160800
    vDA, vQK, vPV, vD9 = 8, 24, 28, 240
    vQL, vXW, vMW, vMR, vRS, vFS, vPWr, vQRd, vQW8, XA = 44, 45, 46, 47, 48, 49, 50, 51, 36, 250
    QF, QS, O, P_, S, REC, PK = 64, 128, 160, 192, 208, 128, 216
    STAMP_OFF = 255 << 20
    e = Asm()
    def E(lst):
        for x in lst: e(x)
    late = [False]
    def stamp(k):
        if early and late[0] and k != 9: return
        if only is not None and k not in only and k not in (0, 9): return
        if stamps or (pad and (k == 0 or k == pad[1])): e(f"{'s_memtime' if cyc else 's_memrealtime'} s[{64 + 2 * k}:{65 + 2 * k}]")
    def srd(n, size): e(f"s_mov_b32 s{n + 2}, {size}\ns_mov_b32 s{n + 3}, 0x20000")
    sX, sU, sW, sT = "s3", "s33", "s34", "s36"
    TP = "s[36:37]"
    def rbf(dst, src): e(f"v_cvt_pk_bf16_f32 {dst}, {src}, {src}\nv_and_b32 {dst}, 0xffff0000, {dst}")
    def mf(d, a, b, c, op="v_mfma_f32_16x16x32_bf16", n=4):
        def r(x, k): return f"{x[0]}[{x[1]}:{x[1] + k - 1}]"
        return f"{op} {r(d, 4)}, {r(a, n)}, {r(b, n)}, " + ("0" if c is None else r(c, 4))
    def load_epoch():
        e(f"s_load_dword s35, s[4:5], {WS_EPOCH}" if WS_EPOCH < (1 << 20) else f"s_mov_b32 s51, {WS_EPOCH}\ns_load_dword s35, s[4:5], s51")
    def make_tag():
        e("s_mul_i32 s36, s35, 0x41c64e6d\ns_add_u32 s36, s36, 0x3c6ef35f\ns_mul_i32 s37, s36, 0x2c9277b5\ns_add_u32 s37, s37, 0xac564b05")
    def red16(v0):
        e(f"""v_permlane32_swap_b32 v{v0}, v{v0+2}
              v_permlane32_swap_b32 v{v0+1}, v{v0+3}
              v_add_f32 v{v0}, v{v0}, v{v0+2}
              v_add_f32 v{v0+1}, v{v0+1}, v{v0+3}
              v_permlane16_swap_b32 v{v0}, v{v0+1}
              v_add_f32 v{v0}, v{v0}, v{v0+1}
              v_add_f32_dpp v{v0}, v{v0}, v{v0} row_ror:4 row_mask:0xf bank_mask:0xf
              v_add_f32_dpp v{v0}, v{v0}, v{v0} row_ror:8 row_mask:0xf bank_mask:0xf""")
    def d9_addrs(vlin, vrow_out, mul, shift, vt):
        e(f"v_lshrrev_b32 v{vt}, 3, v1\nv_mul_u32_u24 v{vt}, 57, v{vt}\ns_mov_b32 s50, {mul}")
        for i in range(9):
            dst = vlin + i if vlin is not None else vt + 3
            e(f"""v_add_u32 v{vt+2}, {8 * 57 * i}, v{vt}
                  v_lshrrev_b32 v{vt+3}, 5, v{vt+2}
                  v_and_b32 v{vt+3}, 0x60, v{vt+3}
                  v_lshrrev_b32 v{vt+2}, {9 + shift}, v{vt+2}""")
            if (i >> 2): e(f"s_movk_i32 s51, {(i >> 2) * 4096}\nv_xad_u32 v{dst}, v{vt+3}, v3, s51")
            else: e(f"v_xor_b32 v{dst}, v{vt+3}, v3")
            e(f"v_mad_u32_u24 v{vrow_out + i}, v{vt+2}, s50, v{dst}")
    def d9_extra(vout, mul, shift, vt):
        e(f"""s_mul_i32 s51, {sW}, {8 * 57}
              v_add_u32 v{vt+2}, s51, v{vt}
              v_lshrrev_b32 v{vt+3}, 5, v{vt+2}
              v_and_b32 v{vt+3}, 0x60, v{vt+3}
              v_lshrrev_b32 v{vt+2}, {9 + shift}, v{vt+2}
              s_lshl_b32 s51, {sW}, 10
              v_xad_u32 v{vt+3}, v{vt+3}, v3, s51
              v_mad_u32_u24 v{vout}, v{vt+2}, s50, v{vt+3}""")
    def dma_extra(va, srdn, soff, ldsbase, fl):
        return [f"s_lshl_b32 s51, {sW}, 10\ns_add_u32 m0, s51, {ldsbase}\nbuffer_load_dwordx4 v{va + 9}, s[{srdn}:{srdn+3}], {soff} offen {fl} lds",
                f"s_mov_b32 m0, {ldsbase + 4096}\nbuffer_load_dwordx4 v{va + 4}, s[{srdn}:{srdn+3}], {soff} offen {fl} lds"]
    def dma9(va, srdn, soff, m0, n=9, fl=None):
        fl = ntv if fl is None else fl
        out = []
        for i in range(n):
            pre = f"s_mov_b32 m0, {m0}\n" if i == 0 else ("s_add_u32 m0, m0, 4096\n" if i % 4 == 0 else "")
            off = f" offset:{(i & 3) * 1024}" if i & 3 else ""
            out.append(pre + f"buffer_load_dwordx4 v{va + i}, s[{srdn}:{srdn+3}], {soff} offen{off} {fl} lds")
        return out
    def t9_addrs(vT, vT16, base16, vt):
        e(f"""v_lshrrev_b32 v{vt}, 2, v1            ; 4g+r
              v_bfe_u32 v{vt+1}, v1, 3, 2            ; sw = 2(g&1)+(r>>1)
              v_and_b32 v{vt+2}, 3, v1
              v_lshlrev_b32 v{vt+2}, 3, v{vt+2}      ; 8*(l&3)
              s_movk_i32 s50, 1152
              v_mad_u32_u24 v{vt+3}, v{vt}, s50, v{vt+2}
              v_and_b32 v{vt}, 3, v{vt}              ; r
              v_mad_u32_u24 v{vt+4}, v{vt}, s50, v{vt+2}
              v_add_u32 v{vt+4}, {base16 + 32 * 1152}, v{vt+4}
              v_lshrrev_b32 v{vt}, 1, v{vt}          ; r>>1
              s_mul_i32 s50, {sW}, 9""")
        for m in range(4):
            e(f"""v_xor_b32 v{vt+2}, s50, v{vt+1}
                  v_lshl_add_u32 v{vT+m}, v{vt+2}, 5, v{vt+3}
                  v_xor_b32 v{vt+2}, s50, v{vt}
                  v_lshl_add_u32 v{vT16+m}, v{vt+2}, 5, v{vt+4}""")
            if m < 3: e("s_add_u32 s50, s50, 1")
    def gemv36(vT, off, vT16, vact, vact16, vfr, vacc, vrec, vst, astride, side=(), every=2):
        rd = [f"ds_read2_b64 v[{vrec}:{vrec+3}], v{vact} offset1:4", f"ds_read_b64 v[{vrec+4}:{vrec+5}], v{vact16} offset:64"]
        for t in range(9):
            m, z = t & 3, t >> 2
            rd.append(f"ds_read_b64_tr_b16 v[{vfr+6*t}:{vfr+6*t+1}], v{vT+m} offset:{off + z * 128}")
            rd.append(f"ds_read_b64_tr_b16 v[{vfr+6*t+2}:{vfr+6*t+3}], v{vT+m} offset:{off + 18432 + z * 128}")
        for t in range(9):
            m, z = t & 3, t >> 2
            rd.append(f"ds_read_b64_tr_b16 v[{vfr+6*t+4}:{vfr+6*t+5}], v{vT16+m} offset:{off + z * 128}")
        rd.append(f"v_cmp_gt_u32 vcc, 16, v1\nv_cndmask_b32 v{vrec+4}, 0, v{vrec+4}, vcc\nv_cndmask_b32 v{vrec+5}, 0, v{vrec+5}, vcc")
        for t in range(9): rd.append(mf(("v", vacc + 4 * t), ("v", vrec), ("v", vfr + 6 * t), None))
        for t in range(9): rd.append(mf(("v", vacc + 4 * t), ("v", vrec + 4), ("v", vfr + 6 * t + 4), ("v", vacc + 4 * t), "v_mfma_f32_16x16x16_bf16", 2))
        e.auto = True
        E(weave(rd, side, every=every))
        e.auto = False
        e("s_mov_b32 exec_hi, 0")
        for a in range(3):
            g = vrec + 8 + 4 * a
            for t in range(3): e(f"v_mov_b32 v{g+t}, v{vacc + 4 * (3 * a + t)}")
            e(f"v_mov_b32 v{g+3}, {sT}\ns_mov_b32 s50, {a * astride}")
            e(f"buffer_store_dwordx4 v[{g}:{g+3}], v{vst}, s[4:7], s50 offen sc1")
        e("s_mov_b32 exec_hi, -1")
    def h5_store_addr(vst, base, vt):
        e(f"""v_bfe_u32 v{vt}, v1, 2, 3              ; b*4+q
              v_and_b32 v{vt+1}, 48, v3
              v_lshl_add_u32 v{vt}, v{vt}, 13, v{vt+1}
              s_mul_i32 s50, {sW}, {24 * 8192}
              s_lshl4_add_u32 s51, {sX}, {sU}
              s_lshl_b32 s51, s51, 6
              s_add_u32 s50, s50, s51
              s_add_u32 s50, s50, {base}
              v_add_u32 v{vst}, s50, v{vt}""")

    e(f"{K}:")
    if skew:
        e(f"""s_memrealtime s[64:65]
              s_and_b32 s50, s2, 7
              s_mul_i32 s50, s50, {skew}
              s_waitcnt lgkmcnt(0)
              s_add_u32 s51, s64, 600
              s_andn2_b32 s51, s51, 511
              s_add_u32 s50, s50, s51
              s_mov_b32 s54, 0
              L_skew:
              s_add_u32 s54, s54, 1
              s_cmp_gt_u32 s54, 100000
              s_cbranch_scc1 L_end
              s_memrealtime s[52:53]
              s_waitcnt lgkmcnt(0)
              s_sub_u32 s51, s52, s50
              s_cmp_lt_i32 s51, 0
              s_cbranch_scc1 L_skew""")

    stamp(0)
    e(f"""s_load_dwordx2 s[4:5], s[0:1], 104
          s_load_dwordx2 s[20:21], s[0:1], 16
          s_load_dwordx2 s[28:29], s[0:1], 0
          v_lshrrev_b32 v2, 6, v0""")
    if codepf:
        e(f"""s_getpc_b64 s[60:61]
              L_pc:
              s_lshr_b32 s50, s2, 3
              v_lshl_add_u32 v6, s50, 2, v2
              v_lshlrev_b32 v6, 7, v6
              v_min_u32 v6, L_end-L_pc-256, v6
              global_load_dword v6, v6, s[60:61] offset:256""")
    e(f"""s_cmp_ge_u32 s2, 256
          s_cbranch_scc1 L_end
          v_and_b32 v1, 63, v0
          s_and_b32 {sX}, s2, 7
          v_readfirstlane_b32 {sW}, v2
          s_lshr_b32 {sU}, s2, 4
          v_lshlrev_b32 v3, 4, v1
          v_lshrrev_b32 v2, 4, v1                 ; g
          s_lshr_b32 s38, {sU}, 2
          s_lshl2_add_u32 s38, {sX}, s38
          s_and_b32 s39, {sU}, 3                  ; j
          s_mul_i32 s48, s39, 9
          s_add_u32 s48, s48, 1
          s_lshr_b32 s48, s48, 1
          s_lshl_b32 s44, s48, 18
          s_mov_b32 s22, {576 * 8192}
          s_mov_b32 s23, 0x20000
          v_mul_u32_u24 v{XA}, 36, v1             ; b*1152 + i*36""")
    srd(28, 2304)
    e("s_bitcmp1_b32 s2, 3\ns_cbranch_scc0 L_a0\ns_mov_b32 s49, 1")
    xs = [128, 129, 130, 132, 133, 134, 136, 137, 138]
    def xloads(lbl):
        e(f"""s_cmp_lg_u32 {sW}, 0
              s_cbranch_scc1 {lbl}
              buffer_load_dwordx3 v[128:130], v{XA}, s[28:31], 0 offen
              buffer_load_dwordx3 v[132:134], v{XA}, s[28:31], 0 offen offset:12
              buffer_load_dwordx3 v[136:138], v{XA}, s[28:31], 0 offen offset:24
              {lbl}:""")

    def setup():
        FT = [2 * ((r & 7) ^ (4 * (r >> 3))) + (r >> 3) for r in range(16)]
        for r in range(16): e(f"v_xor_b32 v{vDA + r}, {FT[r] * 16 + (r >> 2) * 4096}, v3")
        e(f"""s_lshl4_add_u32 s63, {sX}, {sU}         ; cidx
          s_lshl_b32 s46, {sW}, 14
          v_and_b32 v54, 15, v1                   ; rho
          v_lshrrev_b32 v52, 3, v54
          v_lshlrev_b32 v7, 2, v52
          v_xor_b32 v7, v7, v54
          v_and_b32 v7, 7, v7
          v_lshl_or_b32 v7, v7, 1, v52            ; f(rho)
          v_xor_b32 v7, v7, v2
          v_lshlrev_b32 v7, 4, v7
          v_lshl_add_u32 v7, v54, 10, v7
          v_add_u32 v{vQK}, s46, v7""")
        for m in range(1, 4): e(f"v_xor_b32 v{vQK+m}, {64 * m}, v{vQK}")
        e(f"""v_lshrrev_b32 v53, 2, v1                ; key = 4g+r
          v_lshrrev_b32 v52, 5, v1
          v_lshlrev_b32 v7, 2, v52
          v_xor_b32 v7, v7, v53
          v_and_b32 v7, 7, v7
          v_lshl_or_b32 v7, v7, 1, v52            ; f(key)
          v_lshlrev_b32 v7, 1, v7
          v_and_b32 v52, 3, v1
          v_xor_b32 v7, v7, v52
          v_lshlrev_b32 v7, 3, v7
          v_lshl_add_u32 v7, v53, 10, v7
          s_lshl_b32 s50, {sW}, 8
          v_add_u32 v{vPV}, s50, v7""")
        for ct in range(1, 8): e(f"v_xor_b32 v{vPV+ct}, {32 * ct}, v{vPV}")
        e(f"""v_lshrrev_b32 v52, 2, v54
          v_lshlrev_b32 v52, 1, v52
          s_movk_i32 s51, 0x78
          v_bfe_u32 v52, s51, v52, 2
          v_xor_b32 v52, v52, v2
          v_lshlrev_b32 v52, 4, v52
          v_lshl_add_u32 v52, v54, 6, v52
          v_add_u32 v{vQRd}, {QX}, v52
          v_lshlrev_b32 v52, 3, v1
          v_and_b32 v53, 32, v1
          v_xor_b32 v52, v52, v53
          s_lshl_b32 s50, {sW}, 12
          s_add_u32 s50, s50, {QX}
          v_add_u32 v{vQW8}, s50, v52
          v_xor_b32 v{vQW8+1}, {48 + 512}, v{vQW8}""")
        for i in range(2, 8): e(f"v_add_u32 v{vQW8+i}, {1024 * (i >> 1)}, v{vQW8 + (i & 1)}")
        e(f"""s_lshr_b32 s50, s63, 6
          s_lshl1_add_u32 s50, s50, s49
          s_lshl2_add_u32 s50, s50, {sW}
          s_lshl_b32 s50, s50, 13
          s_add_u32 s50, s50, {WS_Q}
          v_add_u32 v{vQL}, s50, v3
          v_add_u32 v{vXW}, {PX}, v3
          s_lshl_b32 s51, {sW}, 10
          v_add_u32 v{vPWr}, s51, v{vXW}
          v_lshlrev_b32 v52, 4, v54
          v_add_u32 v{vMR}, {MX}, v52
          s_lshl_b32 s50, {sW}, 2
          v_add_u32 v{vMW}, s50, v{vMR}
          s_lshl1_add_u32 s51, s63, s49
          s_lshl_b32 s51, s51, 8
          s_add_u32 s51, s51, {WS_FL}
          v_add_u32 v{vFS}, s51, v52
          v_lshl_add_u32 v52, v2, 19, v52
          s_lshl_b32 s50, s49, 6
          s_add_u32 s50, s50, {sW}
          s_lshl_b32 s50, s50, 7
          s_add_u32 s50, s50, s63
          s_lshl_b32 s50, s50, 8
          s_add_u32 s50, s50, {WS_H3}
          v_add_u32 v{vRS}, s50, v52""")
        d9_addrs(None, vD9, "s52", 0, 52)
        d9_extra(vD9 + 9, None, 0, 52)
        e(f"s_mul_i32 s62, {sW}, 9216")
    def capture(fn):
        n = len(e.ins); fn(); out = [x.text for x in e.ins[n:] if x.op != "s_nop"]; del e.ins[n:]; return out
    def cloop(lbl, fl):
        e(f"s_lshl3_add_u32 s50, s63, {sW}\ns_lshl_b32 s44, s50, 14\ns_mov_b32 s47, s46\n{lbl}:")
        for r in range(16):
            e("s_mov_b32 m0, s47" if r == 0 else ("s_add_u32 m0, m0, 4096" if r % 4 == 0 else ""))
            e(f"buffer_load_dwordx4 v{vDA + r}, s[8:11], s44 offen" + (f" offset:{(r & 3) * 1024}" if r & 3 else "") + f" {fl} lds")
        e(f"""s_add_u32 s44, s44, 0x10000
              s_xor_b32 s47, s47, 0x10000
              s_cmp_lg_u32 s47, s46
              s_cbranch_scc1 {lbl}""")
    vDQ = 4
    e(f"""s_and_b32 s50, {sW}, 1
          s_lshl_b32 s50, s50, 3
          v_lshl_add_u32 v7, v2, 1, s50
          v_xor_b32 v7, v7, v1
          v_and_b32 v7, 15, v7
          v_lshlrev_b32 v7, 4, v7
          v_lshl_add_u32 v7, v2, 13, v7
          s_lshl_b32 s50, {sW}, 7
          s_add_u32 s50, s50, s38
          s_lshl_b32 s50, s50, 8
          v_add_u32 v{vDQ}, s50, v7
          v_add_u32 v{vDQ+1}, {131072 - 1024}, v{vDQ}
          s_lshl_b32 s47, {sW}, 11""")
    if early: stamp(13)
    e("s_waitcnt lgkmcnt(0)")
    if early: stamp(15)
    xloads("L_b_ld")
    e(f"""s_mov_b32 m0, s47
          s_add_u32 s47, s47, 8192
          buffer_load_dwordx4 v{vDQ}, s[20:23], s44 offen lds
          buffer_load_dwordx4 v{vDQ+1}, s[20:23], s44 offen offset:1024 lds
          s_add_u32 s44, s44, 0x40000
          s_cmp_eq_u32 s44, {18 << 18}
          s_cselect_b32 s44, 0, s44
          s_cmp_lt_u32 s47, {4 * 8192}
          s_cbranch_scc1 L_b_ld""")
    stamp(10)
    e(f"""s_cmp_lg_u32 {sW}, 0
          s_cbranch_scc1 L_b1
          s_waitcnt vmcnt(8)""")

    F = 140
    e(f"""L_ln:
          v_lshrrev_b32 v56, 5, v1
          v_lshl_add_u32 v{XA}, v56, 3, v{XA}
          v_mul_u32_u24 v56, 1152, v56
          v_add_u32 v56, v56, v{XA}
          v_add_u32 v56, {XN}, v56
          s_mov_b32 s51, 0
          L_ln_loop:""")
    def P(i): return f"v[{F+2*i}:{F+2*i+1}]"
    def unpack(i): return f"v_lshlrev_b32 v{F+2*i}, 16, v{xs[i]}\nv_and_b32 v{F+2*i+1}, 0xffff0000, v{xs[i]}"
    def allred32(v, t):
        return [f"v_add_f32_dpp v{v}, v{v}, v{v} row_ror:{s_} row_mask:0xf bank_mask:0xf" for s_ in (8, 4, 2, 1)] + \
               [f"v_mov_b32 v{t}, v{v}", f"v_permlane16_swap_b32 v{v}, v{t}\nv_add_f32 v{v}, v{v}, v{t}"]
    for i in range(9): e(unpack(i))
    e(f"v_pk_add_f32 v[52:53], {P(0)}, {P(1)}")
    for i in range(2, 9): e(f"v_pk_add_f32 v[52:53], v[52:53], {P(i)}")
    e("v_add_f32 v52, v52, v53")
    E(allred32(52, 53))
    e(f"v_mul_f32 v54, {f32(1 / 576)}, v52")
    rbf("v52", "v54")
    e("v_sub_f32 v54, v54, v52")
    for i in range(9): e(f"v_pk_add_f32 {P(i)}, {P(i)}, v[52:53] op_sel_hi:[1,0] neg_lo:[0,1] neg_hi:[0,1]")
    e(f"v_pk_mul_f32 v[52:53], {P(0)}, {P(0)}")
    for i in range(1, 9): e(f"v_pk_fma_f32 v[52:53], {P(i)}, {P(i)}, v[52:53]")
    e("v_add_f32 v52, v52, v53")
    fill = [f"v_cvt_pk_bf16_f32 v{xs[i]}, v{F+2*i}, v{F+2*i+1}\n" + unpack(i) for i in range(9)]
    tl = allred32(52, 53) + [f"v_mul_f32 v52, {f32(1 / 576)}, v52\nv_fma_f32 v52, -v54, v54, v52\nv_cvt_pk_bf16_f32 v52, v52, v52\nv_and_b32 v52, 0xffff0000, v52\nv_add_f32 v52, {f32(1e-5)}, v52\nv_cvt_pk_bf16_f32 v52, v52, v52\nv_and_b32 v52, 0xffff0000, v52\nv_sqrt_f32 v52, v52",
                             "v_cvt_pk_bf16_f32 v52, v52, v52\nv_and_b32 v52, 0xffff0000, v52\nv_rcp_f32 v52, v52"]
    E(weave(fill, tl))
    for i in range(9):
        e(f"v_pk_mul_f32 {P(i)}, {P(i)}, v[52:53] op_sel_hi:[1,0]\nv_cvt_pk_bf16_f32 v{xs[i]}, v{F+2*i}, v{F+2*i+1}")
    def xwrite(a):
        for i in range(0, 8, 2): e(f"ds_write2_b32 v{a}, v{xs[i]}, v{xs[i+1]} offset0:{i} offset1:{i+1}")
        e(f"ds_write_b32 v{a}, v{xs[8]} offset:32")
    xwrite(56)
    e(f"""s_cmp_lg_u32 s51, 0
          s_cbranch_scc1 L_a2
          s_cmp_lg_u32 s49, 0
          s_cbranch_scc1 L_ln_b
          v_add_u32 v56, {YN}, v{XA}
          s_mov_b32 s51, 1
          s_branch L_ln_loop
          L_ln_b:
          v_add_u32 v56, 1152, v56""")
    xwrite(56)
    stamp(11)

    vUKA, vQ0, vXF, vQW, vQR, vQS = 200, 208, 214, 215, 216, 217
    e("L_b1:")
    load_epoch()
    e(f"""s_load_dwordx2 s[8:9], s[0:1], 8
          s_load_dwordx2 s[12:13], s[0:1], 24
          s_load_dwordx2 s[16:17], s[0:1], 40
          s_load_dwordx2 s[24:25], s[0:1], 32""")
    srd(4, WS_BYTES); srd(8, 2 * 8192 * 1024); srd(12, 512 * 8192); srd(16, 4096 * 1152); srd(24, 512 * 8192)
    e(f"""v_bfe_u32 v55, v1, 2, 2                 ; (l&15)>>2
          v_and_b32 v56, 3, v1
          v_and_b32 v57, 1, v1
          v_lshlrev_b32 v52, 2, v56
          v_xor_b32 v52, v52, v2
          v_lshlrev_b32 v52, 4, v52
          v_lshl_add_u32 v52, v57, 9, v52
          v_bfe_u32 v53, v1, 1, 2
          v_lshl_add_u32 v52, v53, 11, v52
          v_bfe_u32 v53, v1, 3, 1
          v_lshl_add_u32 v52, v53, 10, v52
          s_lshl_b32 s50, {sW}, 13
          v_add_u32 v{vUKA}, s50, v52""")
    for i in range(1, 8): e(f"v_xor_b32 v{vUKA+i}, {64 * (i & 3) + (256 + 32) * (i >> 2)}, v{vUKA}")
    e(f"""v_bfe_u32 v52, v1, 2, 3
          v_lshlrev_b32 v52, 5, v52
          v_lshl_add_u32 v52, v56, 3, v52
          v_lshl_add_u32 v52, v55, 8, v52
          v_lshl_add_u32 v52, v2, 11, v52
          s_lshl_b32 s50, {sW}, 6
          v_xor_b32 v{vQ0}, s50, v52
          v_xor_b32 v{vQ0+1}, 32, v{vQ0}
          v_add_u32 v{vQ0+2}, 0x10000, v{vQ0}
          v_add_u32 v{vQ0+3}, 0x10000, v{vQ0+1}
          v_add_u32 v{vQ0+4}, 0x20000, v{vQ0}
          v_add_u32 v{vQ0+5}, 0x20000, v{vQ0+1}
          v_mul_u32_u24 v52, 2312, v57
          v_lshl_add_u32 v52, v2, 3, v52
          s_lshl_b32 s51, s48, 6
          s_add_u32 s51, s51, {XN}
          v_add_u32 v{vXF}, s51, v52
          v_mul_u32_u24 v52, 320, v57
          v_lshl_add_u32 v52, v2, 3, v52
          s_add_u32 s50, s50, {QQ}
          v_add_u32 v{vQW}, s50, v52
          v_bfe_u32 v53, v1, 2, 1
          v_mul_u32_u24 v52, 320, v53
          v_lshl_add_u32 v52, v2, 4, v52
          v_add_u32 v{vQR}, {QQ}, v52
          v_and_b32 v52, 15, v1
          v_lshlrev_b32 v52, 3, v52
          v_lshl_add_u32 v52, v2, 16, v52
          s_lshr_b32 s55, s38, 4
          s_and_b32 s56, s38, 15
          s_lshl2_add_u32 s50, s55, s39
          s_lshl2_add_u32 s50, s50, {sW}
          s_lshl4_add_u32 s50, s50, s56
          s_lshl_b32 s50, s50, 7
          s_add_u32 s50, s50, {WS_Q}
          v_add_u32 v{vQS}, s50, v52
          s_mov_b32 s52, 0""")

    e("L_b2:")
    e.dsq = []
    vUK = 160
    e(f"s_lshl_b32 s53, s39, 20\ns_lshl_b32 s45, {sW}, 11")
    ukl = []
    for k in range(4):
        ukl += [f"s_mov_b32 m0, s45\ns_add_u32 s45, s45, 8192\nbuffer_load_dwordx4 v{vDQ}, s[12:15], s53 offen {ntuk} lds",
                f"buffer_load_dwordx4 v{vDQ+1}, s[12:15], s53 offen offset:1024 {ntuk} lds\ns_add_u32 s53, s53, 0x40000"]
    ukr = [f"ds_read_b128 v[{vUK+(ee*4+k)*4}:{vUK+(ee*4+k)*4+3}], v{vUKA + 4 * ee + k}" for k in range(4) for ee in range(2)]
    def dq(nt=""):
        return [f"s_mov_b32 m0, s47\ns_add_u32 s47, s47, 8192\nbuffer_load_dwordx4 v{vDQ}, s[20:23], s44 offen {nt} lds",
                f"buffer_load_dwordx4 v{vDQ+1}, s[20:23], s44 offen offset:1024 {nt} lds\ns_add_u32 s44, s44, 0x40000\ns_cmp_eq_u32 s44, {18 << 18}\ns_cselect_b32 s44, 0, s44"]
    E(dq() * 4)
    stamp(1)
    def bset():
        setup()
        e(f"""s_and_b32 s57, s39, 2                   ; 2*cj
              s_and_b32 s51, s39, 1
              s_lshl1_add_u32 s50, s38, s51
              s_mul_i32 s50, s50, 73728
              s_add_u32 s50, s50, s62
              s_mul_i32 s51, s57, 18432
              s_add_u32 s58, s50, s51
              s_xor_b32 s51, s57, 2
              s_mul_i32 s51, s51, 18432
              s_add_u32 s59, s50, s51""")
    bset()
    aXN, aWQ = 0, 72
    rounds = [(0, 4, 8, dq() * 4), (4, 8, 8, dq() * 2 + dq(ntq)), (8, 11, 8, dq(ntq) * 3), (11, 14, 8, ukl), (14, 18, 8, [])]
    e.auto = True
    for pi, (s0_, s1_, vm, side) in enumerate(rounds):
        e(f"s_waitcnt vmcnt({vm})" + (" lgkmcnt(0)" if pi == 0 else "") + "\ns_barrier")
        if early: stamp(3 + pi)
        body = []
        def mm(t):
            return [mf(("v", 64 + 4 * c), ("a", aWQ + t * 8 + c * 4), ("a", aXN + 4 * t), None if t == 0 else ("v", 64 + 4 * c)) for c in range(2)]
        xr = lambda sg: f"ds_read2_b64 a[{aXN+4*sg}:{aXN+4*sg+3}], v{vXF} offset0:{8*sg} offset1:{8*sg+4}"
        for sg in range(s0_, s1_):
            if pi == 0: body.append(xr(sg))
            for c in range(2):
                for u in range(2):
                    r = aWQ + sg * 8 + c * 4 + u * 2
                    body.append(f"ds_read_b64_tr_b16 a[{r}:{r+1}], v{vQ0 + 2 * (sg >> 3) + c} offset:{(sg & 7) * 8192 + u * 1024}")
            if sg - s0_ >= 2: body += mm(sg - 2)
        if pi < 3: body += [xr(sg) for sg in {0: range(4, 9), 1: range(9, 14), 2: range(14, 18)}[pi]]
        body += mm(s1_ - 2) + mm(s1_ - 1)
        E(side[:2] + weave(body, side[2:], every=2))
        if pi == 0: make_tag(); e(f"v_mov_b32 v81, {sT}")
    e(f"""v_cvt_pk_bf16_f32 v72, v64, v65
          v_cvt_pk_bf16_f32 v73, v66, v67
          v_cvt_pk_bf16_f32 v74, v68, v69
          v_cvt_pk_bf16_f32 v75, v70, v71
          ds_write2_b64 v{vQW}, v[72:73], v[74:75] offset1:4
          s_waitcnt vmcnt(0) lgkmcnt(0)
          s_barrier""")
    if early: stamp(8)
    for k in range(4): E([f"ds_read_b128 v[{88+4*k}:{91+4*k}], v{vQR} offset:{64 * k}"] + ukr[2 * k:2 * k + 2])
    e(f"s_mov_b32 s50, {f32(128 ** -0.5 * math.log2(math.e))}")
    for k in range(4):
        for ee in range(2):
            e(mf(("v", 64 + 4 * ee), ("v", 88 + 4 * k), ("v", vUK + (ee * 4 + k) * 4), None if k == 0 else ("v", 64 + 4 * ee)))
    e.auto = False
    e(f"""s_mov_b32 exec_hi, 0
          v_mul_f32 v64, s50, v64
          v_mul_f32 v68, s50, v68
          v_cvt_pk_bf16_f32 v80, v64, v68
          buffer_store_dwordx2 v[80:81], v{vQS}, s[4:7], 0 offen sc1
          s_mov_b32 exec_hi, -1""")
    stamp(12)
    e("s_barrier")

    cloop("L_b_c", ntb)
    e("L_c2:")
    e.dsq = []
    stamp(2)
    def frags(sp):
        return [f"ds_read_b128 a[{sp*64+4*k}:{sp*64+4*k+3}], v{vQK + (k & 3)} offset:{(k >> 2) * 256}" for k in range(16)] + \
               [f"ds_read_b64_tr_b16 a[{128+(k*8+ct)*4+2*sp}:{128+(k*8+ct)*4+2*sp+1}], v{vPV + ct} offset:{k * 16384}" for k in range(4) for ct in range(8)]
    def qloads():
        for i in range(8):
            e(f"buffer_load_dwordx4 v[{QS+4*i}:{QS+4*i+3}], v{vQL}, s[4:7], {'s55' if i >= 4 else '0'} offen offset:{(i & 3) * 1024} sc1")
    def qcheck():
        for i in range(8): e(f"v_bitop3_b32 v{52+i}, v{QS+4*i+1}, v{QS+4*i+3}, {sT} bitop3:0x7e")
        e("""v_or3_b32 v52, v52, v53, v54
             v_or3_b32 v55, v55, v56, v57
             v_or3_b32 v52, v52, v58, v59
             v_or_b32 v52, v52, v55
             v_cmp_ne_u32 vcc, 0, v52""")
    def dmx(va, srdn, soff, base, fl):
        return [(f"s_add_u32 m0, s62, {base + (i >> 2) * 4096}\n") + f"buffer_load_dwordx4 v{va + i}, s[{srdn}:{srdn+3}], {soff} offen" + (f" offset:{(i & 3) * 1024}" if i & 3 else "") + f" {fl} lds" for i in range(9)]
    t9 = dmx(vD9, 16, "s58", 0, nt9)
    if w1pre:
        x2 = dma_extra(vD9, 16, "s59", 4 * 9216, nt9)
        t9[0] = "s_cmp_lg_u32 s49, 0\ns_cbranch_scc1 L_nox2\n" + "\n".join(x2) + "\nL_nox2:\n" + t9[0]
    e("s_movk_i32 s55, 4096")
    if qpos == 0: qloads()
    e(f"s_waitcnt vmcnt({16 + (8 if qpos == 0 else 0)})\ns_barrier")
    E(frags(0))
    for i in range(12): e(f"v_add_u32 v{vQK+i}, 0x10000, v{vQK+i}")
    if qpos == 1: qloads()
    e(f"s_waitcnt vmcnt({8 if qpos < 2 else 0}) lgkmcnt(0)\ns_barrier")
    stamp(14)
    late[0] = True
    if qpos == 2: qloads()
    E(weave(frags(1), t9[:n0], every=4, start=8))
    stamp(3)
    if w1pre and n0: e(f"s_cmp_lg_u32 s49, 0\ns_cbranch_scc1 L_wqb\ns_waitcnt vmcnt({n0 + 2})\ns_mov_b32 s54, 0\ns_branch L_q_chk\nL_wqb:")
    e(f"s_mov_b32 s54, 0\ns_waitcnt vmcnt({n0})\ns_branch L_q_chk\nL_q_retry:")
    qloads()
    e(f"s_add_u32 s54, s54, 1\ns_cmp_gt_u32 s54, {SPIN}\ns_waitcnt vmcnt(0)\ns_cbranch_scc1 L_q_ok\nL_q_chk:")
    qcheck()
    e("s_and_b64 exec, exec, vcc\ns_cbranch_execnz L_q_retry\nL_q_ok:\ns_mov_b64 exec, -1")
    for i in range(8): e(f"ds_write2_b32 v{vQW8+i}, v{QS+4*i}, v{QS+4*i+2} offset1:1")
    e("s_waitcnt lgkmcnt(0)\ns_barrier")
    stamp(4)
    e.dsq = []; e.auto = True
    qr = [f"ds_read_b128 v[{QF+4*k}:{QF+4*k+3}], v{vQRd} offset:{1024 * k}" for k in range(16)]
    def slots(main, sides):
        for i, m in enumerate(main):
            e(m)
            for x in sides.get(i, []): e(x)
    tile = lambda sr, r0: [mf(("v", sr), ("a", r0 + 4 * k), ("v", QF + 4 * k), None if k == 0 else ("v", sr)) for k in range(16)]
    E(qr[:6])
    pre = t9[n0:n1]
    E(pre[:1])
    sa = {}
    for k in range(10): sa.setdefault(2 * k, []).append(qr[k + 6])
    for i, x in enumerate(pre[1:]): sa.setdefault(4 * i + 3, []).append(x)
    slots([m for pair in zip(tile(S, 0), tile(S + 4, 64)) for m in pair], sa)
    e(f"""s_mov_b32 s56, 0x20000
          s_mov_b32 s53, 0x40000
          s_mov_b32 s52, 0x60000
          v_max3_f32 v52, v{S}, v{S+1}, v{S+2}
          v_max3_f32 v52, v52, v{S+3}, v{S+4}
          v_max3_f32 v52, v52, v{S+5}, v{S+6}
          v_max_f32 v52, v52, v{S+7}
          v_mov_b32 v53, v52
          v_permlane32_swap_b32 v52, v53
          v_max_f32 v52, v52, v53
          v_mov_b32 v53, v52
          v_permlane16_swap_b32 v52, v53
          v_max_f32 v52, v52, v53
          ds_write_b32 v{vMW}, v52
          s_waitcnt lgkmcnt(0)
          s_barrier
          ds_read_b128 v[56:59], v{vMR}
          v_mov_b32 v52, 0x3f803f80
          v_mov_b32 v53, v52
          v_mov_b32 v54, v52
          v_mov_b32 v55, v52
          v_mov_b32 v62, s36
          v_mov_b32 v63, s37
          v_max3_f32 v60, v56, v57, v58
          v_max_f32 v60, v60, v59""")
    for i in range(4): e(f"v_pk_add_f32 v[{S+2*i}:{S+2*i+1}], v[{S+2*i}:{S+2*i+1}], v[60:61] op_sel_hi:[1,0] neg_lo:[0,1] neg_hi:[0,1]")
    for i in range(8): e(f"v_exp_f32 v{S+i}, v{S+i}")
    for i in range(4): e(f"v_cvt_pk_bf16_f32 v{PK+i}, v{S+2*i}, v{S+2*i+1}")
    e(f"ds_write_b128 v{vPWr}, v[{PK}:{PK+3}]\ns_waitcnt lgkmcnt(0)\ns_barrier")
    for k in range(4): e(f"ds_read_b128 v[{P_+4*k}:{P_+4*k+3}], v{vXW} offset:{1024 * k}")
    pv = [mf(("v", O + 4 * ct), ("v", P_ + 4 * k), ("a", 128 + (k * 8 + ct) * 4), None if k == 0 else ("v", O + 4 * ct)) for ct in range(8) for k in range(4)]
    def rst(r): return f"buffer_store_dwordx4 v[{REC+4*r}:{REC+4*r+3}], v{vRS}, s[4:7], {('0', 's56', 's53', 's52')[r]} offen sc1"
    def epi(j): return [f"v_cvt_pk_bf16_f32 v{REC+4*r+j}, v{O+8*j+r}, v{O+8*j+4+r}" for r in range(4)]
    sd = {}
    for r in range(4):
        sd.setdefault(14 + r, []).append(epi(0)[r]); sd.setdefault(22 + r, []).append(epi(1)[r])
    slots(pv, sd)
    lm = [mf(("v", 56), ("v", 52), ("v", P_ + 4 * k), None if k == 0 else ("v", 56)) for k in range(4)]
    E(weave(lm[:2], epi(2), per=2))
    for r in range(4): E([epi(3)[r], rst(r)])
    stamp(5)
    E(lm[2:])
    e.auto = False
    def flag(lbl, n):
        e(f"""s_cmp_lg_u32 {sW}, 3
              s_waitcnt vmcnt({n})
              s_barrier
              s_cbranch_scc1 {lbl}
              s_mov_b64 exec, 0xffff
              buffer_store_dwordx4 v[60:63], v{vFS}, s[4:7], 0 offen sc1
              s_mov_b64 exec, -1
              {lbl}:""")
        stamp(6)
    E(t9[n1:])
    e("v_mov_b32 v61, v56\ns_cmp_eq_u32 s49, 0\ns_cbranch_scc1 L_a3")

    RV, RO1 = 73728, 36864
    vDV, vTV, vT, vT16, vH3, vFL, vBP, vCW, vCR, vS5, vLW, vLR, vMK = 8, 9, 12, 16, 20, 21, 22, 23, 24, 25, 26, 27, 28
    e(f"""v_lshlrev_b32 v52, 5, v2
          v_xor_b32 v52, v52, v3
          v_and_b32 v52, 0x70, v52
          v_lshrrev_b32 v53, 3, v1
          v_lshl_add_u32 v52, v53, 13, v52
          s_lshl4_add_u32 s50, s57, {sW}
          s_lshl_b32 s50, s50, 8
          s_add_u32 s50, s50, s38
          s_and_b32 s51, s39, 1
          s_lshl1_add_u32 s50, s50, s51
          s_lshl_b32 s50, s50, 7
          v_add_u32 v{vDV}, s50, v52
          s_lshl_b32 s48, {sW}, 10""")
    uvd = [f"s_add_u32 m0, s48, {RV + k * 4096}\ns_mov_b32 s52, {k * 0x40000}\nbuffer_load_dwordx4 v{vDV}, s[24:27], s52 offen {ntv} lds" for k in range(8)]
    E(uvd[:uv0])
    e(f"""v_and_b32 v56, 3, v1
          v_and_b32 v57, 1, v1
          v_bfe_u32 v52, v1, 3, 2
          v_xor_b32 v52, {sW}, v52
          v_lshlrev_b32 v52, 5, v52
          v_lshl_add_u32 v52, v56, 3, v52
          v_lshrrev_b32 v53, 2, v1
          v_lshl_add_u32 v52, v53, 7, v52
          v_add_u32 v{vTV}, {RV}, v52
          v_bfe_u32 v53, v1, 2, 1
          v_lshl_add_u32 v52, v53, 1, v57
          v_mul_u32_u24 v52, 160, v52
          v_lshl_add_u32 v52, v2, 4, v52
          v_add_u32 v{vCR}, {CX}, v52
          v_mul_u32_u24 v52, 544, v56
          v_lshl_add_u32 v52, v2, 4, v52
          v_add_u32 v{vLR}, {CL}, v52
          v_mul_u32_u24 v52, 160, v56
          v_lshl_add_u32 v52, v2, 4, v52
          s_xor_b32 s50, {sW}, s39
          s_lshr_b32 s50, s50, 1
          s_lshl_b32 s50, s50, 3
          s_and_b32 s51, {sW}, 1
          s_add_u32 s50, s50, s51
          s_lshl3_add_u32 s50, s50, {CX}
          v_add_u32 v{vCW}, s50, v52
          v_bfe_u32 v53, v1, 1, 3                 ; n>>1
          v_lshlrev_b32 v52, 6, v53
          v_lshl_add_u32 v52, v2, 4, v52
          v_lshl_add_u32 v52, v57, 3, v52
          s_mul_i32 s50, {sW}, 544
          s_add_u32 s50, s50, {CL}
          v_add_u32 v{vLW}, s50, v52
          v_lshlrev_b32 v52, 4, v57
          v_mov_b32 v54, 0xffff
          v_lshlrev_b32 v54, v52, v54
          v_cmp_eq_u32 vcc, 0, v53
          v_cndmask_b32 v{vMK}, 0, v54, vcc
          v_cmp_eq_u32 vcc, 1, v53
          v_cndmask_b32 v{vMK+1}, 0, v54, vcc
          v_cmp_eq_u32 vcc, 2, v53
          v_cndmask_b32 v{vMK+2}, 0, v54, vcc
          v_cmp_eq_u32 vcc, 3, v53
          v_cndmask_b32 v{vMK+3}, 0, v54, vcc
          v_lshlrev_b32 v{vBP}, 2, v2
          s_lshl2_add_u32 s50, s38, s57
          s_lshl2_add_u32 s50, s50, {sW}
          s_lshl_b32 s50, s50, 13
          s_add_u32 s50, s50, {WS_H3}
          v_add_u32 v{vH3}, s50, v3
          s_lshl_b32 s50, {sW}, 5
          v_xor_b32 v52, s50, v1
          s_lshl4_add_u32 s50, s38, {WS_FL}
          v_lshl_add_u32 v{vFL}, v52, 9, s50""")
    h5_store_addr(vS5, WS_H5S, 52)
    t9_addrs(vT, vT16, 0, 52)
    flag("L_noflb", 9 - n1 + uv0)
    E(uvd[uv0:])
    E(dmx(vD9, 16, "s59", RO1, nt2))
    def wo_frag(sg, t): return ("a", 32 + 4 * (sg * 9 + t))
    def wo_read(sg):
        return [f"ds_read_b64_tr_b16 a[{wo_frag(sg, t)[1]+2*u}:{wo_frag(sg, t)[1]+2*u+1}], v{vT + (t & 3)} offset:{sg * 36864 + u * 18432 + (t >> 2) * 128}" for t in range(9) for u in range(2)]
    e("s_waitcnt vmcnt(9)\ns_barrier")
    E(wo_read(0))
    E([f"ds_read_b64_tr_b16 a[{4*k+2*u}:{4*k+2*u+1}], v{vTV} offset:{k * 4096 + u * 2048}" for k in range(8) for u in range(2)])
    e("s_waitcnt vmcnt(0)\ns_barrier"); E(wo_read(1))
    stamp(13)
    G, GR, WW, WP = 64, 200, 128, 32
    e(f"""s_mov_b32 s54, 0
          s_movk_i32 s50, 4096
          s_mov_b32 s51, 32768
          s_mov_b32 s52, 36864
          v_mov_b32 v{GR+3}, {sT}
          v_mov_b32 v{GR+7}, {sT}
          v_mov_b32 v{GR+11}, {sT}
          L_fl:
          buffer_load_dwordx4 v[44:47], v{vFL}, s[4:7], 0 offen sc1
          s_add_u32 s54, s54, 1
          s_cmp_gt_u32 s54, {SPIN}
          s_waitcnt vmcnt(0)
          s_cbranch_scc1 L_h3
          v_cmp_ne_u64 vcc, {TP}, v[46:47]
          s_cbranch_vccnz L_fl
          L_h3:""")
    for i in range(16): e(f"buffer_load_dwordx4 v[{G+4*i}:{G+4*i+3}], v{vH3}, s[4:7], {('0', 's50', 's51', 's52')[i >> 2]} offen offset:{1024 * (i & 3)} sc1")
    stamp(15)
    e("v_mov_b32 v52, v44")
    for s_ in (8, 4, 2, 1): e(f"v_max_f32_dpp v52, v52, v52 row_ror:{s_} row_mask:0xf bank_mask:0xf")
    e("""v_mov_b32 v53, v52
         v_permlane16_swap_b32 v52, v53
         v_max_f32 v52, v52, v53
         v_mov_b32 v53, v52
         v_permlane32_swap_b32 v52, v53
         v_max_f32 v52, v52, v53
         v_sub_f32 v52, v44, v52
         v_exp_f32 v52, v52
         v_mul_f32 v53, v52, v45""")
    E(allred32(53, 54))
    e("v_mov_b32 v54, v53\nv_permlane32_swap_b32 v53, v54\nv_add_f32 v53, v53, v54")
    e("v_rcp_f32 v53, v53\nv_mul_f32 v52, v52, v53\nv_cvt_pk_bf16_f32 v52, v52, v52\ns_waitcnt lgkmcnt(0)")
    e.auto = True
    for i in range(8): e(f"ds_bpermute_b32 v{WP+i}, v{vBP}, v52 offset:{16 * i}")
    for i in range(8):
        for j in range(4): e(f"v_and_b32 v{WW+4*i+j}, v{WP+i}, v{vMK+j}")
    for i in range(16):
        if i % 2 == 0 or i > 12: e(f"s_waitcnt vmcnt({15 - i - (1 if i < 12 and i % 2 == 0 else 0)})")
        if i == 15: stamp(8)
        e(mf(("v", 52 + 4 * (i >> 3)), ("v", G + 4 * i), ("v", WW + 4 * (i & 7)), None if (i & 7) == 0 else ("v", 52 + 4 * (i >> 3))))
    e(f"""s_mov_b32 exec_lo, 0x00ff00ff
          s_mov_b32 exec_hi, 0x00ff00ff
          v_cvt_pk_bf16_f32 v60, v52, v53
          v_cvt_pk_bf16_f32 v61, v54, v55
          v_cvt_pk_bf16_f32 v62, v56, v57
          v_cvt_pk_bf16_f32 v63, v58, v59
          ds_write2_b64 v{vLW}, v[60:61], v[62:63] offset1:32
          s_mov_b64 exec, -1
          s_waitcnt lgkmcnt(0)
          s_barrier""")
    for k in range(8): e(f"ds_read_b128 v[{G+4*k}:{G+4*k+3}], v{vLR} offset:{64 * k}")
    for k in range(8): e(mf(("v", 52), ("a", 4 * k), ("v", G + 4 * k), None if k == 0 else ("v", 52)))
    e(f"""v_cvt_pk_bf16_f32 v60, v52, v53
          v_cvt_pk_bf16_f32 v61, v54, v55
          ds_write_b64 v{vCW}, v[60:61]
          s_waitcnt lgkmcnt(0)
          s_barrier""")
    CA, D3 = 96, 160
    for sg in range(2): e(f"ds_read_b128 v[{CA+4*sg}:{CA+4*sg+3}], v{vCR} offset:{64 * sg}")
    e("s_mov_b32 s50, 0x10000\ns_mov_b32 s51, 0x20000\ns_mov_b32 exec_hi, 0")
    def emit_out(a):
        for t in range(3):
            r = D3 + 4 * (3 * a + t)
            e(f"v_add_f32 v{GR+4*a+t}, v{r}, v{r+1}")
        e(f"buffer_store_dwordx4 v[{GR+4*a}:{GR+4*a+3}], v{vS5}, s[4:7], {'0' if a == 0 else f's{49+a}'} offen sc1")
    for t in range(9):
        for sg in range(2):
            e(mf(("v", D3 + 4 * t), ("v", CA + 4 * sg), wo_frag(sg, t), None if sg == 0 else ("v", D3 + 4 * t)))
        if t == 5: emit_out(0)
    emit_out(1); emit_out(2)
    e.auto = False
    e("s_mov_b32 exec_hi, -1")
    stamp(7)
    e("s_branch L_fin")

    e("L_a3:")
    e.dsq = []
    RW2 = 45056
    vW2, vTk, vT16k, vM5, vHA, vHA16, vY, vY16, vHM = 8, 18, 22, 26, 27, 28, 44, 45, 46
    if not w1pre: E(dma_extra(vD9, 16, "s59", 4 * 9216, nt9))
    npost = 9 - n1 + (0 if w1pre else 2)
    assert not gvd or npost == 0
    e(f"""s_load_dwordx2 s[20:21], s[0:1], 72
          s_load_dwordx2 s[12:13], s[0:1], 80
          s_load_dwordx2 s[40:41], s[0:1], 88
          s_mov_b32 s22, {4608 * 1152}
          s_mov_b32 s14, 1152""")
    srd(40, 2304)
    t9_addrs(vTk, vT16k, 0, 52)
    e(f"""v_and_b32 v29, 3, v1
          v_and_b32 v37, 4, v1
          v_mul_u32_u24 v52, 290, v37
          s_mul_i32 s50, {sU}, 72
          s_add_u32 s50, s50, {YN}
          v_add_u32 v{vY16}, s50, v52
          v_lshl_add_u32 v{vY}, v2, 3, v{vY16}
          v_bfe_u32 v52, v1, 2, 2
          v_mul_u32_u24 v52, 6144, v52
          v_lshl_add_u32 v52, v2, 10, v52
          v_lshl_add_u32 v52, v29, 4, v52
          s_lshl2_add_u32 s50, {sX}, {sW}
          s_mul_i32 s50, s50, {4 * 6144}
          s_lshl_b32 s51, {sU}, 6
          s_add_u32 s50, s50, s51
          s_add_u32 s50, s50, {WS_HM}
          v_add_u32 v{vHM}, s50, v52""")
    if gvd:
        e("s_waitcnt vmcnt(4) lgkmcnt(0)\ns_barrier")
        stamp(11)
        gemv36(vTk, 0, vT16k, vY, vY16, 64, 144, 180, vHM, 2048)
        stamp(12)
        flag("L_nofla", 3)
    else: flag("L_nofla", npost)
    d9_addrs(None, vW2, 18432 - 4608, 2, 52)
    d9_extra(vW2 + 9, None, 2, 52)
    e(f"""s_lshr_b32 s50, {sU}, 2
          s_mul_i32 s50, s50, 144
          s_mul_i32 s51, {sX}, 576
          s_add_u32 s50, s50, s51
          s_lshl2_add_u32 s58, s39, s50
          s_mul_i32 s53, s58, 1152
          s_add_u32 s57, s53, {4 * 36864}
          s_lshl2_add_u32 s53, s62, s53
          s_mul_i32 s50, s63, 3
          s_add_u32 s50, s50, {sW}
          s_lshl_b32 s50, s50, 11
          s_add_u32 s59, s50, {WS_HM}
          v_lshl_add_u32 v30, v2, 4, v29          ; 16g+e
          s_mul_i32 s50, {sW}, 48
          s_add_u32 s50, s50, s58
          v_add_lshl_u32 v31, v30, s50, 1
          s_mul_i32 s44, {sX}, 12
          s_add_u32 s44, s44, {sU}                ; r
          s_lshr_b32 s50, s44, 3
          s_mul_i32 s50, s50, 48
          s_and_b32 s51, s44, 3
          s_lshl2_add_u32 s50, s51, s50
          v_add_lshl_u32 v33, v30, s50, 1
          s_bfe_u32 s51, s44, 0x10002
          s_mul_i32 s48, s51, 1152
          v_lshlrev_b32 v34, 4, v0
          s_lshl_b32 s45, s44, 13
          s_add_u32 s46, s45, {WS_H5M}
          s_add_u32 s47, s46, 4096
          v_lshl_add_u32 v35, v2, 2, v29
          v_lshlrev_b32 v35, 4, v35
          v_add_u32 v35, {FX}, v35
          s_lshl_b32 s50, {sW}, 2
          v_add_u32 v36, s50, v35
          v_mul_u32_u24 v38, 34, v37
          v_add_u32 v{vHA16}, {HX}, v38
          v_lshl_add_u32 v{vHA}, v2, 3, v{vHA16}""")
    h5_store_addr(vM5, WS_H5M, 52)
    w2d = dmx(vW2, 20, "s53", RW2, ntv) + dma_extra(vW2, 20, "s57", RW2 + 4 * 9216, ntv)
    e("s_waitcnt lgkmcnt(0)")
    if not gvd:
        E(w2d[:w2a])
        e(f"s_waitcnt vmcnt({w2a})\ns_barrier")
        stamp(11)
        gemv36(vTk, 0, vT16k, vY, vY16, 64, 120, 160, vHM, 2048)
        stamp(12)
        E(w2d[w2a:])
    else: E(w2d)
    e(f"""buffer_load_ushort v32, v31, s[24:27], 0 offen
          buffer_load_ushort v40, v33, s[12:15], 0 offen
          buffer_load_ushort v41, v33, s[28:31], s48 offen""")
    if pretouch:
        e(f"""s_cmp_ge_u32 {sU}, 12
              s_cbranch_scc1 L_a_np
              s_add_u32 s50, s45, {WS_H5S}
              v_lshlrev_b32 v42, 5, v0
              buffer_load_dword v43, v42, s[4:7], s50 offen sc1
              L_a_np:""")
    e(f"""s_cmp_eq_u32 {sW}, 3
          s_cbranch_scc1 L_a_nx3
          s_mov_b32 s54, 0
          L_hm:
          buffer_load_dwordx4 v[64:67], v3, s[4:7], s59 offen sc1
          buffer_load_dwordx4 v[68:71], v3, s[4:7], s59 offen offset:1024 sc1
          s_add_u32 s54, s54, 1
          s_cmp_gt_u32 s54, {SPIN}
          s_waitcnt vmcnt(0)
          s_cbranch_scc1 L_hm_done
          v_bitop3_b32 v39, v67, v71, {sT} bitop3:0x7e
          v_cmp_ne_u32 vcc, 0, v39
          s_cbranch_vccnz L_hm
          L_hm_done:""")
    stamp(13)
    red16(64); red16(68)
    c1 = -2 * math.sqrt(2 / math.pi) * math.log2(math.e)
    e(f"""v_cmp_ne_u32 vcc, 0, v37
          v_lshlrev_b32 v32, 16, v32
          v_cndmask_b32 v64, v64, v68, vcc""")
    rbf("v64", "v64")
    e("v_add_f32 v64, v64, v32")
    rbf("v64", "v64")
    e(f"""v_mul_f32 v65, v64, v64
          v_mov_b32 v66, {f32(c1)}
          v_fmac_f32 v66, {f32(c1 * 0.044715)}, v65
          v_mul_f32 v65, v66, v64
          v_exp_f32 v65, v65
          v_add_f32 v65, 1.0, v65
          v_rcp_f32 v65, v65
          v_mul_f32 v64, v64, v65
          v_cvt_pk_bf16_f32 v64, v64, v64
          v_lshl_add_u32 v39, v29, 1, v{vHA}
          s_mul_i32 s50, {sW}, 24
          v_add_u32 v39, s50, v39
          s_mov_b32 exec_hi, 0xffff
          ds_write_b16 v39, v64
          s_mov_b32 exec_hi, -1
          L_a_nx3:
          s_waitcnt vmcnt(0) lgkmcnt(0)
          s_barrier""")
    e.dsq = []
    stamp(15)
    gemv36(vTk, RW2, vT16k, vHA, vHA16, 64, 120, 160, vM5, 65536)
    stamp(7)
    e(f"""s_cmp_ge_u32 {sU}, 12
          s_cbranch_scc1 L_fin
          s_add_u32 s56, s45, {WS_H5S}
          s_add_u32 s57, s56, 4096
          s_mov_b32 s54, 0
          s_waitcnt vmcnt(0)
          L_f_m:
          buffer_load_dwordx4 v[64:67], v34, s[4:7], s46 offen sc1
          buffer_load_dwordx4 v[68:71], v34, s[4:7], s47 offen sc1
          s_add_u32 s54, s54, 1
          s_cmp_gt_u32 s54, {SPIN}
          s_waitcnt vmcnt(0)
          s_cbranch_scc1 L_f_md
          v_bitop3_b32 v63, v67, v71, {sT} bitop3:0x7e
          v_cmp_ne_u32 vcc, 0, v63
          s_and_b64 exec, exec, vcc
          s_cbranch_execnz L_f_m
          L_f_md:
          s_mov_b64 exec, -1
          buffer_load_dwordx4 v[72:75], v34, s[4:7], s56 offen sc1
          buffer_load_dwordx4 v[76:79], v34, s[4:7], s57 offen sc1""")
    def fin_red(a, off):
        e(f"v_add_f32 v{a}, v{a}, v{a+4}\nv_add_f32 v{a+1}, v{a+1}, v{a+5}\nv_add_f32 v{a+2}, v{a+2}, v{a+6}")
        red16(a)
        e(f"""ds_write_b32 v36, v{a} offset:{off}
              s_waitcnt lgkmcnt(0)
              s_barrier
              ds_read_b128 v[64:67], v35 offset:{off}
              s_waitcnt lgkmcnt(0)
              v_add_f32 v64, v64, v65
              v_add_f32 v66, v66, v67
              v_add_f32 v64, v64, v66""")
        rbf("v64", "v64")
    fin_red(64, 0)
    e(f"v_lshlrev_b32 v40, 16, v40\nv_add_f32 v64, v64, v40")
    rbf("v64", "v64")
    e(f"""v_mul_f32 v65, {f32(-math.log2(math.e))}, v64
          v_exp_f32 v65, v65
          v_add_f32 v65, 1.0, v65
          v_rcp_f32 v65, v65
          v_mul_f32 v40, v64, v65""")
    rbf("v40", "v40")
    e("v_lshlrev_b32 v41, 16, v41")
    stamp(8)
    e(f"""s_mov_b32 s54, 0
          s_branch L_f_sw
          L_f_s:
          buffer_load_dwordx4 v[72:75], v34, s[4:7], s56 offen sc1
          buffer_load_dwordx4 v[76:79], v34, s[4:7], s57 offen sc1
          L_f_sw:
          s_add_u32 s54, s54, 1
          s_cmp_gt_u32 s54, {SPIN}
          s_waitcnt vmcnt(0)
          s_cbranch_scc1 L_f_sd
          v_bitop3_b32 v63, v75, v79, {sT} bitop3:0x7e
          v_cmp_ne_u32 vcc, 0, v63
          s_and_b64 exec, exec, vcc
          s_cbranch_execnz L_f_s
          L_f_sd:
          s_mov_b64 exec, -1""")
    fin_red(72, 256)
    e(f"""
          v_mul_f32 v64, v64, v40""")
    rbf("v64", "v64")
    e(f"""v_add_f32 v64, v41, v64
          v_cvt_pk_bf16_f32 v64, v64, v64
          s_cmp_lg_u32 {sW}, 0
          s_cbranch_scc1 L_fin
          s_mov_b32 exec_lo, 0x000f000f
          s_mov_b32 exec_hi, 0x0000000f
          buffer_store_short v64, v33, s[40:43], s48 offen
          s_cmp_lg_u32 s44, 0
          s_cbranch_scc1 L_fin
          s_mov_b64 exec, 1
          v_mov_b32 v65, {sT}
          v_mov_b32 v66, {WS_EPOCH}
          buffer_store_dword v65, v66, s[4:7], 0 offen""")
    e("s_branch L_fin")
    late[0] = False
    e("L_a0:\ns_mov_b32 s49, 0")
    uktouch = f"""s_lshl_b32 s50, s39, 20
          s_lshl_b32 s51, s38, 8
          s_add_u32 s50, s50, s51
          buffer_load_dword v5, v4, s[12:15], s50 offen"""
    e(f"""s_load_dwordx2 s[8:9], s[0:1], 8
          s_load_dwordx2 s[12:13], s[0:1], 24
          s_load_dwordx2 s[16:17], s[0:1], 56
          s_load_dwordx2 s[24:25], s[0:1], 64
          v_lshrrev_b32 v4, 1, v0
          v_and_b32 v5, 1, v0
          v_lshlrev_b32 v4, 13, v4
          v_lshl_add_u32 v4, v5, 7, v4
          s_lshl_b32 s51, s38, 8
          s_add_u32 s45, s44, s51
          s_add_u32 s45, s45, {3 << 18}""")
    srd(4, WS_BYTES); srd(8, 2 * 8192 * 1024); srd(12, 512 * 8192); srd(16, 576 * 9216); srd(24, 9216)
    e("s_waitcnt lgkmcnt(0)")
    load_epoch()
    xloads("L_a_nx")
    e(f"""s_and_b32 s50, s39, 1
          s_lshl2_add_u32 s50, s50, {sW}
          s_cmp_lg_u32 s50, 1
          s_cbranch_scc1 L_a_nt
          buffer_load_dword v5, v4, s[20:23], s45 offen
          L_a_nt:
          s_movk_i32 s52, {9216 - 1152}""")
    stamp(10)
    sa_ = capture(setup)
    cutp = int(len(sa_) * tpos)
    E(sa_[:cutp])
    e(uktouch.replace("s50", "s53").replace("s51", "s54"))
    E(sa_[cutp:])
    e(f"""s_mul_i32 s58, {sU}, {36 * 9216}
          s_mul_i32 s51, {sX}, 1152
          s_add_u32 s58, s58, s51
          s_add_u32 s59, s58, {4 * 73728}
          s_lshl3_add_u32 s58, s62, s58
          s_waitcnt lgkmcnt(0)""")
    make_tag()
    if early: stamp(13)
    e(f"""s_cmp_lg_u32 {sW}, 0
          s_cbranch_scc1 L_a2
          s_waitcnt vmcnt(1)
          s_branch L_ln
          L_a2:""")
    if early: stamp(15)
    cloop("L_a_c", ntc)
    e("s_branch L_c2")
    e("L_fin:")
    if pad:
        role, k = pad
        if role == 3:
            e(f"s_cmp_lg_u32 {sX}, {k - 100}\ns_cbranch_scc1 L_end")
            k = 0
        e(f"""s_waitcnt lgkmcnt(0)
              s_bfe_u32 s50, s2, 0x10003
              s_cmp_eq_u32 s50, {role}
              s_cselect_b32 s50, s{64 + 2 * k}, s64
              s_add_u32 s50, s50, 4000
              s_mov_b32 s54, 0
              L_pad:
              s_add_u32 s54, s54, 1
              s_cmp_gt_u32 s54, 100000
              s_cbranch_scc1 L_end
              s_memrealtime s[52:53]
              s_waitcnt lgkmcnt(0)
              s_sub_u32 s51, s52, s50
              s_cmp_lt_i32 s51, 0
              s_cbranch_scc1 L_pad""")
    if stamps:
        stamp(9)
        e("s_mov_b64 exec, -1\ns_waitcnt lgkmcnt(0)")
        for k in range(16): e(f"v_mov_b32 v{64+k}, s{64 + 2 * k}")
        e(f"""s_lshl2_add_u32 s50, s2, {sW}
              s_lshl_b32 s50, s50, 6
              s_add_u32 s50, s50, {STAMP_OFF}
              v_mov_b32 v63, 0
              s_mov_b64 exec, 1
              buffer_store_dwordx4 v[64:67], v63, s[4:7], s50 offen
              buffer_store_dwordx4 v[68:71], v63, s[4:7], s50 offen offset:16
              buffer_store_dwordx4 v[72:75], v63, s[4:7], s50 offen offset:32
              buffer_store_dwordx4 v[76:79], v63, s[4:7], s50 offen offset:48""")
    e("L_end:\ns_endpgm")
    head = f"""; Persistent single-launch kernel: absorbed-MLA decode attention + channel MLP (generated by gen/gen10.py)
; @launch grid=(256,1,1) block=(256,1,1) lds=163840
.amdgcn_target "amdgcn-amd-amdhsa--gfx950"
.text
.globl {K}
.p2align 8
.type {K},@function
"""
    tail = f""".section .rodata,"a"
.p2align 6
.amdhsa_kernel {K}
  .amdhsa_next_free_vgpr 512
  .amdhsa_next_free_sgpr 96
  .amdhsa_accum_offset 256
  .amdhsa_group_segment_fixed_size 0
  .amdhsa_kernarg_size 112
  .amdhsa_user_sgpr_count 2
  .amdhsa_user_sgpr_kernarg_segment_ptr 1
  .amdhsa_system_sgpr_workgroup_id_x 1
.end_amdhsa_kernel
"""
    return head + e.text() + tail

if __name__ == "__main__":
    out = sys.argv[1]
    kw = {}
    for a in sys.argv[2:]:
        k, v = a.split("=", 1)
        kw[k] = eval(v)
    open(out, "w").write(gen(**kw))
```

```python
import sys, math, struct
from asmlib import Asm, weave

NAME = "recurrent_scan__compressed_kv_cla__mixer_channel_mlp__decode"
K = NAME + "_kernel"
WS_BYTES = 268435456
SPIN = 1 << 17
def f32(x): return "0x%08x" % struct.unpack("<I", struct.pack("<f", x))[0]

def gen(stamps=False, wsb=0, pad=None, codepf=True, pretouch=True, only=None, skew=0, cyc=False, early=False,
        ntv="nt", nt2="nt", ntuk="nt", ntq="", touch_uk=True, tpos=0, mixuv=1, wgflag=True, qa=0, qb=8, w2touch=2, help=1, hwait=False, ngv=99, outsc=""):
    WS_EPOCH = wsb
    WS_Q = wsb + 4096
    WS_FL = wsb + 0x40000
    WS_H3 = wsb + 0x60000
    WS_HM = WS_H3 + 128 * 16384
    WS_H5M = WS_HM + 128 * 6144
    WS_H5S = WS_H5M + 96 * 8192
    QX, PX, MX, HX, FX = 131072, 147456, 155648, 155904, 156160
    XN, YN, QQ, CX, CL = 152576, 157200, 159520, 160160, 160800
    vDA, vQK, vPV, vT0 = 8, 24, 28, 248
    vQL, vXW, vMW, vMR, vRS, vFS, vPWr, vQRd, vQW8, XA = 44, 45, 46, 47, 48, 49, 50, 51, 240, 250
    QF, QS, T2, O, P_, S, REC, PK = 64, 128, 160, 160, 192, 224, 128, 240
    STAMP_OFF = 255 << 20
    e = Asm()
    def E(lst):
        for x in lst: e(x)
    late = [False]
    def stamp(k):
        if early and late[0] and k != 9: return
        if only is not None and k not in only and k not in (0, 9): return
        if stamps or (pad and (k == 0 or k == pad[1])): e(f"{'s_memtime' if cyc else 's_memrealtime'} s[{64 + 2 * k}:{65 + 2 * k}]")
    def srd(n, size): e(f"s_mov_b32 s{n + 2}, {size}\ns_mov_b32 s{n + 3}, 0x20000")
    sX, sU, sW, sT = "s3", "s33", "s34", "s36"
    TP = "s[36:37]"
    def rbf(dst, src): e(f"v_cvt_pk_bf16_f32 {dst}, {src}, {src}\nv_and_b32 {dst}, 0xffff0000, {dst}")
    def mf(d, a, b, c, op="v_mfma_f32_16x16x32_bf16", n=4):
        def r(x, k): return f"{x[0]}[{x[1]}:{x[1] + k - 1}]"
        return f"{op} {r(d, 4)}, {r(a, n)}, {r(b, n)}, " + ("0" if c is None else r(c, 4))
    def load_epoch():
        e(f"s_load_dword s35, s[4:5], {WS_EPOCH}" if WS_EPOCH < (1 << 20) else f"s_mov_b32 s51, {WS_EPOCH}\ns_load_dword s35, s[4:5], s51")
    def make_tag():
        e("s_mul_i32 s36, s35, 0x41c64e6d\ns_add_u32 s36, s36, 0x3c6ef35f\ns_mul_i32 s37, s36, 0x2c9277b5\ns_add_u32 s37, s37, 0xac564b05")
    def red16(v0):
        e(f"""v_permlane32_swap_b32 v{v0}, v{v0+2}
              v_permlane32_swap_b32 v{v0+1}, v{v0+3}
              v_add_f32 v{v0}, v{v0}, v{v0+2}
              v_add_f32 v{v0+1}, v{v0+1}, v{v0+3}
              v_permlane16_swap_b32 v{v0}, v{v0+1}
              v_add_f32 v{v0}, v{v0}, v{v0+1}
              v_add_f32_dpp v{v0}, v{v0}, v{v0} row_ror:4 row_mask:0xf bank_mask:0xf
              v_add_f32_dpp v{v0}, v{v0}, v{v0} row_ror:8 row_mask:0xf bank_mask:0xf""")
    def d9_addrs(vlin, vrow_out, mul, shift, vt):
        e(f"v_lshrrev_b32 v{vt}, 3, v1\nv_mul_u32_u24 v{vt}, 57, v{vt}\ns_mov_b32 s50, {mul}")
        for i in range(9):
            dst = vlin + i if vlin is not None else vt + 3
            e(f"""v_add_u32 v{vt+2}, {8 * 57 * i}, v{vt}
                  v_lshrrev_b32 v{vt+3}, 5, v{vt+2}
                  v_and_b32 v{vt+3}, 0x60, v{vt+3}
                  v_lshrrev_b32 v{vt+2}, {9 + shift}, v{vt+2}""")
            if (i >> 2): e(f"s_movk_i32 s51, {(i >> 2) * 4096}\nv_xad_u32 v{dst}, v{vt+3}, v3, s51")
            else: e(f"v_xor_b32 v{dst}, v{vt+3}, v3")
            e(f"v_mad_u32_u24 v{vrow_out + i}, v{vt+2}, s50, v{dst}")
    def d9_extra(vout, mul, shift, vt):
        e(f"""s_mul_i32 s51, {sW}, {8 * 57}
              v_add_u32 v{vt+2}, s51, v{vt}
              v_lshrrev_b32 v{vt+3}, 5, v{vt+2}
              v_and_b32 v{vt+3}, 0x60, v{vt+3}
              v_lshrrev_b32 v{vt+2}, {9 + shift}, v{vt+2}
              s_lshl_b32 s51, {sW}, 10
              v_xad_u32 v{vt+3}, v{vt+3}, v3, s51
              v_mad_u32_u24 v{vout}, v{vt+2}, s50, v{vt+3}""")
    def dma_extra(va, srdn, soff, ldsbase, fl):
        return [f"s_lshl_b32 s51, {sW}, 10\ns_add_u32 m0, s51, {ldsbase}\nbuffer_load_dwordx4 v{va + 9}, s[{srdn}:{srdn+3}], {soff} offen {fl} lds",
                f"s_mov_b32 m0, {ldsbase + 4096}\nbuffer_load_dwordx4 v{va + 4}, s[{srdn}:{srdn+3}], {soff} offen {fl} lds"]
    def dma9(va, srdn, soff, m0, n=9, fl=None):
        fl = ntv if fl is None else fl
        out = []
        for i in range(n):
            pre = f"s_mov_b32 m0, {m0}\n" if i == 0 else ("s_add_u32 m0, m0, 4096\n" if i % 4 == 0 else "")
            off = f" offset:{(i & 3) * 1024}" if i & 3 else ""
            out.append(pre + f"buffer_load_dwordx4 v{va + i}, s[{srdn}:{srdn+3}], {soff} offen{off} {fl} lds")
        return out
    def t9_addrs(vT, vT16, base16, vt):
        e(f"""v_lshrrev_b32 v{vt}, 2, v1            ; 4g+r
              v_bfe_u32 v{vt+1}, v1, 3, 2            ; sw = 2(g&1)+(r>>1)
              v_and_b32 v{vt+2}, 3, v1
              v_lshlrev_b32 v{vt+2}, 3, v{vt+2}      ; 8*(l&3)
              s_movk_i32 s50, 1152
              v_mad_u32_u24 v{vt+3}, v{vt}, s50, v{vt+2}
              v_and_b32 v{vt}, 3, v{vt}              ; r
              v_mad_u32_u24 v{vt+4}, v{vt}, s50, v{vt+2}
              v_add_u32 v{vt+4}, {base16 + 32 * 1152}, v{vt+4}
              v_lshrrev_b32 v{vt}, 1, v{vt}          ; r>>1
              s_mul_i32 s50, {sW}, 9""")
        for m in range(4):
            e(f"""v_xor_b32 v{vt+2}, s50, v{vt+1}
                  v_lshl_add_u32 v{vT+m}, v{vt+2}, 5, v{vt+3}
                  v_xor_b32 v{vt+2}, s50, v{vt}
                  v_lshl_add_u32 v{vT16+m}, v{vt+2}, 5, v{vt+4}""")
            if m < 3: e("s_add_u32 s50, s50, 1")
    def gemv36(vT, off, vT16, vact, vact16, vfr, vacc, vrec, vst, astride, side=(), every=2):
        rd = [f"ds_read2_b64 v[{vrec}:{vrec+3}], v{vact} offset1:4", f"ds_read_b64 v[{vrec+4}:{vrec+5}], v{vact16} offset:64"]
        for t in range(9):
            m, z = t & 3, t >> 2
            rd.append(f"ds_read_b64_tr_b16 v[{vfr+6*t}:{vfr+6*t+1}], v{vT+m} offset:{off + z * 128}")
            rd.append(f"ds_read_b64_tr_b16 v[{vfr+6*t+2}:{vfr+6*t+3}], v{vT+m} offset:{off + 18432 + z * 128}")
        for t in range(9):
            m, z = t & 3, t >> 2
            rd.append(f"ds_read_b64_tr_b16 v[{vfr+6*t+4}:{vfr+6*t+5}], v{vT16+m} offset:{off + z * 128}")
        rd.append(f"v_cmp_gt_u32 vcc, 16, v1\nv_cndmask_b32 v{vrec+4}, 0, v{vrec+4}, vcc\nv_cndmask_b32 v{vrec+5}, 0, v{vrec+5}, vcc")
        for t in range(9): rd.append(mf(("v", vacc + 4 * t), ("v", vrec), ("v", vfr + 6 * t), None))
        for t in range(9): rd.append(mf(("v", vacc + 4 * t), ("v", vrec + 4), ("v", vfr + 6 * t + 4), ("v", vacc + 4 * t), "v_mfma_f32_16x16x16_bf16", 2))
        e.auto = True
        E(weave(rd, side, every=every))
        e.auto = False
        e("s_mov_b32 exec_hi, 0")
        for a in range(3):
            g = vrec + 8 + 4 * a
            for t in range(3): e(f"v_mov_b32 v{g+t}, v{vacc + 4 * (3 * a + t)}")
            e(f"v_mov_b32 v{g+3}, {sT}\ns_mov_b32 s50, {a * astride}")
            e(f"buffer_store_dwordx4 v[{g}:{g+3}], v{vst}, s[4:7], s50 offen sc1")
        e("s_mov_b32 exec_hi, -1")
    def h5_store_addr(vst, base, vt):
        e(f"""v_bfe_u32 v{vt}, v1, 2, 3              ; b*4+q
              v_and_b32 v{vt+1}, 48, v3
              v_lshl_add_u32 v{vt}, v{vt}, 13, v{vt+1}
              s_mul_i32 s50, {sW}, {24 * 8192}
              s_lshl4_add_u32 s51, {sX}, {sU}
              s_lshl_b32 s51, s51, 6
              s_add_u32 s50, s50, s51
              s_add_u32 s50, s50, {base}
              v_add_u32 v{vst}, s50, v{vt}""")

    e(f"{K}:")
    if skew:
        e(f"""s_memrealtime s[64:65]
              s_and_b32 s50, s2, 7
              s_mul_i32 s50, s50, {skew}
              s_waitcnt lgkmcnt(0)
              s_add_u32 s51, s64, 600
              s_andn2_b32 s51, s51, 511
              s_add_u32 s50, s50, s51
              s_mov_b32 s54, 0
              L_skew:
              s_add_u32 s54, s54, 1
              s_cmp_gt_u32 s54, 100000
              s_cbranch_scc1 L_end
              s_memrealtime s[52:53]
              s_waitcnt lgkmcnt(0)
              s_sub_u32 s51, s52, s50
              s_cmp_lt_i32 s51, 0
              s_cbranch_scc1 L_skew""")

    stamp(0)
    e(f"""s_load_dwordx2 s[4:5], s[0:1], 104
          s_load_dwordx2 s[20:21], s[0:1], 16
          s_load_dwordx2 s[28:29], s[0:1], 0
          s_load_dwordx2 s[8:9], s[0:1], 8
          s_load_dwordx2 s[12:13], s[0:1], 24
          v_lshrrev_b32 v2, 6, v0""")
    if codepf:
        e(f"""s_getpc_b64 s[60:61]
              L_pc:
              s_lshr_b32 s50, s2, 3
              v_lshl_add_u32 v6, s50, 2, v2
              v_lshlrev_b32 v6, 7, v6
              v_min_u32 v6, L_end-L_pc-256, v6
              global_load_dword v6, v6, s[60:61] offset:256""")
    e(f"""s_cmp_ge_u32 s2, 256
          s_cbranch_scc1 L_end
          v_and_b32 v1, 63, v0
          s_and_b32 {sX}, s2, 7
          v_readfirstlane_b32 {sW}, v2
          s_lshr_b32 {sU}, s2, 4
          v_lshlrev_b32 v3, 4, v1
          v_lshrrev_b32 v2, 4, v1                 ; g
          s_lshr_b32 s38, {sU}, 2
          s_lshl2_add_u32 s38, {sX}, s38
          s_and_b32 s39, {sU}, 3                  ; j
          s_mul_i32 s48, s39, 9
          s_add_u32 s48, s48, 1
          s_lshr_b32 s48, s48, 1
          s_lshl_b32 s44, s48, 18
          s_mov_b32 s22, {576 * 8192}
          s_mov_b32 s23, 0x20000
          v_mul_u32_u24 v{XA}, 36, v1             ; b*1152 + i*36""")
    srd(28, 2304); srd(12, 512 * 8192)
    e("s_bitcmp1_b32 s2, 3\ns_cbranch_scc0 L_a0")
    xs = [128, 129, 130, 132, 133, 134, 136, 137, 138]
    def xloads(lbl):
        e(f"""s_cmp_lg_u32 {sW}, 0
              s_cbranch_scc1 {lbl}
              buffer_load_dwordx3 v[128:130], v{XA}, s[28:31], 0 offen
              buffer_load_dwordx3 v[132:134], v{XA}, s[28:31], 0 offen offset:12
              buffer_load_dwordx3 v[136:138], v{XA}, s[28:31], 0 offen offset:24
              {lbl}:""")

    vDQ = 4
    RUK = 14 * 8192
    ukl = []
    for k in range(4):
        ukl += [f"s_add_u32 m0, s46, {RUK + k * 8192}\nbuffer_load_dwordx4 v{vDQ}, s[12:15], s53 offen {ntuk} lds",
                f"buffer_load_dwordx4 v{vDQ+1}, s[12:15], s53 offen offset:1024 {ntuk} lds\ns_add_u32 s53, s53, 0x40000"]
    nq = [4]
    def dq(nt=""):
        sg = nq[0]; nq[0] += 1
        return [f"s_add_u32 m0, s46, {(sg % 14) * 8192}\nbuffer_load_dwordx4 v{vDQ}, s[20:23], s44 offen {nt} lds",
                f"buffer_load_dwordx4 v{vDQ+1}, s[20:23], s44 offen offset:1024 {nt} lds" + (f"\ns_add_u32 s44, s44, 0x40000\ns_cmp_eq_u32 s44, {18 << 18}\ns_cselect_b32 s44, 0, s44" if sg < 17 else "")]
    e(f"""s_and_b32 s50, {sW}, 1
          s_lshl_b32 s50, s50, 3
          v_lshl_add_u32 v7, v2, 1, s50
          v_xor_b32 v7, v7, v1
          v_and_b32 v7, 15, v7
          v_lshlrev_b32 v7, 4, v7
          v_lshl_add_u32 v7, v2, 13, v7
          s_lshl_b32 s50, {sW}, 7
          s_add_u32 s50, s50, s38
          s_lshl_b32 s50, s50, 8
          v_add_u32 v{vDQ}, s50, v7
          v_add_u32 v{vDQ+1}, {131072 - 1024}, v{vDQ}
          s_lshl_b32 s47, {sW}, 11
          s_mov_b32 s46, s47
          s_lshl_b32 s53, s39, 20""")
    if early: stamp(13)
    e("s_waitcnt lgkmcnt(0)")
    if early: stamp(15)
    xloads("L_b_ld")
    e(f"""s_mov_b32 m0, s47
          s_add_u32 s47, s47, 8192
          buffer_load_dwordx4 v{vDQ}, s[20:23], s44 offen lds
          buffer_load_dwordx4 v{vDQ+1}, s[20:23], s44 offen offset:1024 lds
          s_add_u32 s44, s44, 0x40000
          s_cmp_eq_u32 s44, {18 << 18}
          s_cselect_b32 s44, 0, s44
          s_cmp_lt_u32 s47, {4 * 8192}
          s_cbranch_scc1 L_b_ld""")
    if not touch_uk:
        E(dq()); E(ukl)
    stamp(10)
    e(f"""s_cmp_lg_u32 {sW}, 0
          s_cbranch_scc1 L_b1
          s_waitcnt vmcnt({8 if touch_uk else 18})""")

    F = 140
    e(f"""L_ln:
          v_lshrrev_b32 v56, 5, v1
          v_lshl_add_u32 v{XA}, v56, 3, v{XA}
          v_mul_u32_u24 v56, 1152, v56
          v_add_u32 v56, v56, v{XA}
          v_add_u32 v56, {XN}, v56
          s_mov_b32 s49, 0
          L_ln_loop:""")
    def P(i): return f"v[{F+2*i}:{F+2*i+1}]"
    def unpack(i): return f"v_lshlrev_b32 v{F+2*i}, 16, v{xs[i]}\nv_and_b32 v{F+2*i+1}, 0xffff0000, v{xs[i]}"
    def allred32(v, t):
        return [f"v_add_f32_dpp v{v}, v{v}, v{v} row_ror:{s_} row_mask:0xf bank_mask:0xf" for s_ in (8, 4, 2, 1)] + \
               [f"v_mov_b32 v{t}, v{v}", f"v_permlane16_swap_b32 v{v}, v{t}\nv_add_f32 v{v}, v{v}, v{t}"]
    for i in range(9): e(unpack(i))
    e(f"v_pk_add_f32 v[52:53], {P(0)}, {P(1)}")
    for i in range(2, 9): e(f"v_pk_add_f32 v[52:53], v[52:53], {P(i)}")
    e("v_add_f32 v52, v52, v53")
    E(allred32(52, 53))
    e(f"v_mul_f32 v54, {f32(1 / 576)}, v52")
    rbf("v52", "v54")
    e("v_sub_f32 v54, v54, v52")
    for i in range(9): e(f"v_pk_add_f32 {P(i)}, {P(i)}, v[52:53] op_sel_hi:[1,0] neg_lo:[0,1] neg_hi:[0,1]")
    e(f"v_pk_mul_f32 v[52:53], {P(0)}, {P(0)}")
    for i in range(1, 9): e(f"v_pk_fma_f32 v[52:53], {P(i)}, {P(i)}, v[52:53]")
    e("v_add_f32 v52, v52, v53")
    fill = [f"v_cvt_pk_bf16_f32 v{xs[i]}, v{F+2*i}, v{F+2*i+1}\n" + unpack(i) for i in range(9)]
    tl = allred32(52, 53) + [f"v_mul_f32 v52, {f32(1 / 576)}, v52\nv_fma_f32 v52, -v54, v54, v52\nv_cvt_pk_bf16_f32 v52, v52, v52\nv_and_b32 v52, 0xffff0000, v52\nv_add_f32 v52, {f32(1e-5)}, v52\nv_cvt_pk_bf16_f32 v52, v52, v52\nv_and_b32 v52, 0xffff0000, v52\nv_sqrt_f32 v52, v52",
                             "v_cvt_pk_bf16_f32 v52, v52, v52\nv_and_b32 v52, 0xffff0000, v52\nv_rcp_f32 v52, v52"]
    E(weave(fill, tl))
    for i in range(9):
        e(f"v_pk_mul_f32 {P(i)}, {P(i)}, v[52:53] op_sel_hi:[1,0]\nv_cvt_pk_bf16_f32 v{xs[i]}, v{F+2*i}, v{F+2*i+1}")
    def xwrite(a):
        for i in range(0, 8, 2): e(f"ds_write2_b32 v{a}, v{xs[i]}, v{xs[i+1]} offset0:{i} offset1:{i+1}")
        e(f"ds_write_b32 v{a}, v{xs[8]} offset:32")
    xwrite(56)
    e(f"""s_cmp_lg_u32 s49, 0
          s_cbranch_scc1 L_b_y
          v_add_u32 v56, 1152, v56""")
    xwrite(56)
    stamp(11)

    vUKA, vQ0, vXF, vQW, vQR, vQS = 200, 208, 214, 215, 216, 217
    e("L_b1:")
    if help:
        e("s_mov_b64 s[40:41], s[8:9]"); srd(40, 2 * 8192 * 1024)
    load_epoch()
    e(f"""s_load_dwordx2 s[8:9], s[0:1], 56
          s_load_dwordx2 s[16:17], s[0:1], 40
          s_load_dwordx2 s[24:25], s[0:1], 32""")
    srd(4, WS_BYTES); srd(8, 576 * 9216); srd(16, 4096 * 1152); srd(24, 512 * 8192)
    e(f"""v_bfe_u32 v55, v1, 2, 2                 ; (l&15)>>2
          v_and_b32 v56, 3, v1
          v_and_b32 v57, 1, v1
          v_lshlrev_b32 v52, 2, v56
          v_xor_b32 v52, v52, v2
          v_lshlrev_b32 v52, 4, v52
          v_lshl_add_u32 v52, v57, 9, v52
          v_bfe_u32 v53, v1, 1, 2
          v_lshl_add_u32 v52, v53, 11, v52
          v_bfe_u32 v53, v1, 3, 1
          v_lshl_add_u32 v52, v53, 10, v52
          s_lshl_b32 s50, {sW}, 13
          s_add_u32 s50, s50, {RUK}
          v_add_u32 v{vUKA}, s50, v52""")
    for i in range(1, 8): e(f"v_xor_b32 v{vUKA+i}, {64 * (i & 3) + (256 + 32) * (i >> 2)}, v{vUKA}")
    e(f"""v_bfe_u32 v52, v1, 2, 3
          v_lshlrev_b32 v52, 5, v52
          v_lshl_add_u32 v52, v56, 3, v52
          v_lshl_add_u32 v52, v55, 8, v52
          v_lshl_add_u32 v52, v2, 11, v52
          s_lshl_b32 s50, {sW}, 6
          v_xor_b32 v{vQ0}, s50, v52
          v_xor_b32 v{vQ0+1}, 32, v{vQ0}
          v_add_u32 v{vQ0+2}, 0x10000, v{vQ0}
          v_add_u32 v{vQ0+3}, 0x10000, v{vQ0+1}
          v_mul_u32_u24 v52, 2312, v57
          v_lshl_add_u32 v52, v2, 3, v52
          s_lshl_b32 s51, s48, 6
          s_add_u32 s51, s51, {XN}
          v_add_u32 v{vXF}, s51, v52
          v_mul_u32_u24 v52, 320, v57
          v_lshl_add_u32 v52, v2, 3, v52
          s_add_u32 s50, s50, {QQ}
          v_add_u32 v{vQW}, s50, v52
          v_bfe_u32 v53, v1, 2, 1
          v_mul_u32_u24 v52, 320, v53
          v_lshl_add_u32 v52, v2, 4, v52
          v_add_u32 v{vQR}, {QQ}, v52
          v_and_b32 v52, 15, v1
          v_lshlrev_b32 v52, 3, v52
          v_lshl_add_u32 v52, v2, 16, v52
          s_lshr_b32 s55, s38, 4
          s_and_b32 s56, s38, 15
          s_lshl2_add_u32 s50, s55, s39
          s_lshl2_add_u32 s50, s50, {sW}
          s_lshl4_add_u32 s50, s50, s56
          s_lshl_b32 s50, s50, 7
          s_add_u32 s50, s50, {WS_Q}
          v_add_u32 v{vQS}, s50, v52
          s_and_b32 s57, s39, 2                   ; 2*cj""")

    e.dsq = []
    vUK = 160
    vL, vW1, vDV = 220, 230, 218
    ukr = [f"ds_read_b128 v[{vUK+(ee*4+k)*4}:{vUK+(ee*4+k)*4+3}], v{vUKA + 4 * ee + k}" for k in range(4) for ee in range(2)]
    def dqs(n, nt=""): return [x for _ in range(n) for x in dq(nt)]
    if touch_uk: E(dqs(4))
    stamp(1)
    d9_addrs(vL, vW1, 9216 - 1152, 0, 52)
    d9_extra(vW1 + 9, None, 0, 52)
    e(f"""v_lshlrev_b32 v52, 5, v2
          v_xor_b32 v52, v52, v3
          v_and_b32 v52, 0x70, v52
          v_lshrrev_b32 v53, 3, v1
          v_lshl_add_u32 v52, v53, 13, v52
          s_lshl4_add_u32 s50, s57, {sW}
          s_lshl_b32 s50, s50, 8
          s_add_u32 s50, s50, s38
          s_and_b32 s51, s39, 1
          s_lshl1_add_u32 s50, s50, s51
          s_lshl_b32 s50, s50, 7
          v_add_u32 v{vDV}, s50, v52
          s_mul_i32 s62, {sW}, 9216
          s_lshl1_add_u32 s50, s38, s51
          s_mul_i32 s50, s50, 73728
          s_add_u32 s50, s50, s62
          s_mul_i32 s51, s57, 18432
          s_add_u32 s58, s50, s51
          s_xor_b32 s51, s57, 2
          s_mul_i32 s51, s51, 18432
          s_add_u32 s59, s50, s51
          s_mul_i32 s63, {sU}, {36 * 9216}
          s_mul_i32 s51, {sX}, 1152
          s_add_u32 s63, s63, s51
          s_add_u32 s45, s63, {4 * 73728}
          s_lshl3_add_u32 s63, s62, s63
          s_lshl_b32 s48, {sW}, 10""")
    aXN, aWQ = 0, 72
    if touch_uk: rounds = [(0, 4, 8, lambda: dqs(4)), (4, 8, 8, lambda: dqs(2) + dqs(1, ntq)), (8, 11, 8, lambda: dqs(3, ntq)), (11, 14, 8, lambda: ukl), (14, 18, 8, lambda: [])]
    else: rounds = [(0, 5, 8, lambda: dqs(7)), (5, 8, 8, lambda: dqs(2) + dqs(1, ntq)), (8, 11, 8, lambda: dqs(3, ntq)), (11, 15, 6, lambda: []), (15, 18, 0, lambda: [])]
    e.auto = True
    for pi, (s0_, s1_, vm, side) in enumerate(rounds):
        side = side()
        e(f"s_waitcnt vmcnt({vm})" + (" lgkmcnt(0)" if pi == 0 else "") + "\ns_barrier")
        if early: stamp(3 + pi)
        body = []
        def mm(t):
            return [mf(("v", 64 + 4 * c), ("a", aWQ + t * 8 + c * 4), ("a", aXN + 4 * t), None if t == 0 else ("v", 64 + 4 * c)) for c in range(2)]
        xr = lambda sg: f"ds_read2_b64 a[{aXN+4*sg}:{aXN+4*sg+3}], v{vXF} offset0:{8*sg} offset1:{8*sg+4}"
        for sg in range(s0_, s1_):
            if pi == 0: body.append(xr(sg))
            for c in range(2):
                for u in range(2):
                    r = aWQ + sg * 8 + c * 4 + u * 2; ps = sg % 14
                    body.append(f"ds_read_b64_tr_b16 a[{r}:{r+1}], v{vQ0 + 2 * (ps >> 3) + c} offset:{(ps & 7) * 8192 + u * 1024}")
            if sg - s0_ >= 2: body += mm(sg - 2)
        if pi < 3: body += [xr(sg) for sg in {0: range(s1_, 9), 1: range(9, 14), 2: range(14, 18)}[pi]]
        if pi == 3 and not touch_uk: body += ukr
        body += mm(s1_ - 2) + mm(s1_ - 1)
        E(side[:2] + weave(body, side[2:], every=2))
        if pi == 0: make_tag(); e(f"v_mov_b32 v81, {sT}")
    assert nq[0] == 18
    e(f"""v_cvt_pk_bf16_f32 v72, v64, v65
          v_cvt_pk_bf16_f32 v73, v66, v67
          v_cvt_pk_bf16_f32 v74, v68, v69
          v_cvt_pk_bf16_f32 v75, v70, v71
          ds_write2_b64 v{vQW}, v[72:73], v[74:75] offset1:4
          s_waitcnt vmcnt(0) lgkmcnt(0)
          s_barrier""")
    if early: stamp(8)
    for k in range(4): E([f"ds_read_b128 v[{88+4*k}:{91+4*k}], v{vQR} offset:{64 * k}"] + (ukr[2 * k:2 * k + 2] if touch_uk else []))
    e(f"s_mov_b32 s50, {f32(128 ** -0.5 * math.log2(math.e))}")
    for k in range(4):
        for ee in range(2):
            e(mf(("v", 64 + 4 * ee), ("v", 88 + 4 * k), ("v", vUK + (ee * 4 + k) * 4), None if k == 0 else ("v", 64 + 4 * ee)))
    e.auto = False
    e(f"""s_mov_b32 exec_hi, 0
          v_mul_f32 v64, s50, v64
          v_mul_f32 v68, s50, v68
          v_cvt_pk_bf16_f32 v80, v64, v68
          buffer_store_dwordx2 v[80:81], v{vQS}, s[4:7], 0 offen sc1
          s_mov_b32 exec_hi, -1""")
    stamp(12 if early else 3)
    late[0] = True
    R1, RV, RO = 0, 43008, 75776
    vTV, vT, vT2, vT16, vH3, vFL, vBP, vCW, vCR, vS5, vLW, vLR, vMK, vY, vY16, vHM = 8, 12, 240, 16, 20, 21, 22, 23, 24, 25, 26, 27, 28, 9, 10, 11
    def dmx(va, srdn, soff, base, fl):
        return [f"s_add_u32 m0, s62, {base + (i >> 2) * 4096}\nbuffer_load_dwordx4 v{va + i}, s[{srdn}:{srdn+3}], {soff} offen" + (f" offset:{(i & 3) * 1024}" if i & 3 else "") + f" {fl} lds" for i in range(9)]
    w1d = dma_extra(vW1, 8, "s45", R1 + 4 * 9216, ntv) + dmx(vW1, 8, "s63", R1, ntv)
    wod = [dmx(vL, 16, "s58", RO, ""), dmx(vL, 16, "s59", RO + 36864, nt2)]
    uvd = [f"s_add_u32 m0, s48, {RV + k * 4096}\ns_mov_b32 s52, {k * 0x40000}\nbuffer_load_dwordx4 v{vDV}, s[24:27], s52 offen {ntv} lds" for k in range(8)]
    if mixuv == 1: seq = weave(w1d, uvd[:4], every=3, start=1) + weave(wod[0], uvd[4:], every=2, start=1)
    elif mixuv == 2: seq = w1d + weave(wod[0], uvd)
    else: seq = w1d + wod[0] + uvd
    last_w1 = max(i for i, x in enumerate(seq) if "s[8:11]" in x)
    n1 = min(len(seq), last_w1 + 1 + 8)
    if help:
        e(f"""s_lshl4_add_u32 s50, {sX}, {sU}
              s_lshl3_add_u32 s50, s50, {sW}
              s_lshl_b32 s50, s50, 14
              s_add_u32 s50, s50, {0x10000 + 8192}
              v_lshlrev_b32 v58, 7, v1
              buffer_load_dword v59, v58, s[40:43], s50 offen""")
        if help > 1: e("s_sub_u32 s50, s50, 8192\nbuffer_load_dword v59, v58, s[40:43], s50 offen")
    NV0 = 0 if hwait else 8
    E(seq[:NV0])
    e(f"""s_cmp_lg_u32 {sW}, 0
          s_cbranch_scc1 L_b_y
          v_add_u32 v56, {YN}, v{XA}
          s_mov_b32 s49, 1
          s_branch L_ln_loop
          L_b_y:
          v_and_b32 v56, 3, v1
          v_and_b32 v57, 1, v1
          v_bfe_u32 v52, v1, 3, 2
          v_xor_b32 v52, {sW}, v52
          v_lshlrev_b32 v52, 5, v52
          v_lshl_add_u32 v52, v56, 3, v52
          v_lshrrev_b32 v53, 2, v1
          v_lshl_add_u32 v52, v53, 7, v52
          v_add_u32 v{vTV}, {RV}, v52
          v_bfe_u32 v53, v1, 2, 1
          v_mul_u32_u24 v52, 1160, v53
          s_mul_i32 s50, {sU}, 72
          s_add_u32 s50, s50, {YN}
          v_add_u32 v{vY16}, s50, v52
          v_lshl_add_u32 v{vY}, v2, 3, v{vY16}
          v_lshl_add_u32 v52, v53, 1, v57
          v_mul_u32_u24 v52, 160, v52
          v_lshl_add_u32 v52, v2, 4, v52
          v_add_u32 v{vCR}, {CX}, v52
          v_bfe_u32 v52, v1, 2, 2
          v_mul_u32_u24 v52, 6144, v52
          v_lshl_add_u32 v52, v2, 10, v52
          v_lshl_add_u32 v52, v56, 4, v52
          s_lshl2_add_u32 s50, {sX}, {sW}
          s_mul_i32 s50, s50, {4 * 6144}
          s_lshl_b32 s51, {sU}, 6
          s_add_u32 s50, s50, s51
          s_add_u32 s50, s50, {WS_HM}
          v_add_u32 v{vHM}, s50, v52
          v_mul_u32_u24 v52, 544, v56
          v_lshl_add_u32 v52, v2, 4, v52
          v_add_u32 v{vLR}, {CL}, v52
          v_mul_u32_u24 v52, 160, v56
          v_lshl_add_u32 v52, v2, 4, v52
          s_xor_b32 s50, {sW}, s39
          s_lshr_b32 s50, s50, 1
          s_lshl_b32 s50, s50, 3
          s_and_b32 s51, {sW}, 1
          s_add_u32 s50, s50, s51
          s_lshl3_add_u32 s50, s50, {CX}
          v_add_u32 v{vCW}, s50, v52
          v_bfe_u32 v53, v1, 1, 3                 ; n>>1
          v_lshlrev_b32 v52, 6, v53
          v_lshl_add_u32 v52, v2, 4, v52
          v_lshl_add_u32 v52, v57, 3, v52
          s_mul_i32 s50, {sW}, 544
          s_add_u32 s50, s50, {CL}
          v_add_u32 v{vLW}, s50, v52
          v_lshlrev_b32 v52, 4, v57
          v_mov_b32 v54, 0xffff
          v_lshlrev_b32 v54, v52, v54
          v_cmp_eq_u32 vcc, 0, v53
          v_cndmask_b32 v{vMK}, 0, v54, vcc
          v_cmp_eq_u32 vcc, 1, v53
          v_cndmask_b32 v{vMK+1}, 0, v54, vcc
          v_cmp_eq_u32 vcc, 2, v53
          v_cndmask_b32 v{vMK+2}, 0, v54, vcc
          v_cmp_eq_u32 vcc, 3, v53
          v_cndmask_b32 v{vMK+3}, 0, v54, vcc
          v_lshlrev_b32 v{vBP}, 2, v2
          s_lshl2_add_u32 s50, s38, s57
          s_lshl2_add_u32 s50, s50, {sW}
          s_lshl_b32 s50, s50, 12
          s_add_u32 s50, s50, {WS_H3}
          v_add_u32 v{vH3}, s50, v3
          s_lshl_b32 s50, {sW}, 4
          v_and_b32 v52, 31, v1
          v_xor_b32 v52, s50, v52""")
    if wgflag:
        e(f"s_lshl4_add_u32 s50, s38, {WS_FL}\nv_lshl_add_u32 v{vFL}, v52, 9, s50")
    else:
        e(f"""v_lshrrev_b32 v53, 5, v1
              v_lshl_add_u32 v52, v53, 6, v52
              s_lshl2_add_u32 s50, s55, s57
              s_lshl_b32 s50, s50, 14
              s_lshl4_add_u32 s50, s56, s50
              s_add_u32 s50, s50, {WS_FL}
              v_lshl_add_u32 v{vFL}, v52, 8, s50""")
    h5_store_addr(vS5, WS_H5S, 52)
    t9_addrs(vT, vT16, 0, 52)
    for m in range(4): e(f"v_add_u32 v{vT2+m}, {RO}, v{vT+m}")
    if hwait: e("s_waitcnt vmcnt(0)")
    E(seq[NV0:n1])
    e(f"s_waitcnt vmcnt({n1 - 1 - last_w1}) lgkmcnt(0)\ns_barrier")
    n2 = min(len(seq), n1 + ngv)
    gemv36(vT, R1, vT16, vY, vY16, 64, 120, 160, vHM, 2048, side=seq[n1:n2], every=5 if ngv > 5 else 9)
    stamp(4)
    E(seq[n2:])
    E(wod[1])
    def wo_frag(sg, t): return ("a", 32 + 4 * (sg * 9 + t))
    def wo_read(sg):
        return [f"ds_read_b64_tr_b16 a[{wo_frag(sg, t)[1]+2*u}:{wo_frag(sg, t)[1]+2*u+1}], v{vT2 + (t & 3)} offset:{sg * 36864 + u * 18432 + (t >> 2) * 128}" for t in range(9) for u in range(2)]
    e(f"s_waitcnt vmcnt({12 if n2 == len(seq) else 9})\ns_barrier")
    E(wo_read(0))
    E([f"ds_read_b64_tr_b16 a[{4*k+2*u}:{4*k+2*u+1}], v{vTV} offset:{k * 4096 + u * 2048}" for k in range(8) for u in range(2)])
    e("s_waitcnt vmcnt(0)\ns_barrier"); E(wo_read(1))
    stamp(5)
    G, GR, WW, WP = 64, 200, 128, 32
    e(f"""s_mov_b32 s54, 0
          s_movk_i32 s50, 16384
          v_mov_b32 v{GR+3}, {sT}
          v_mov_b32 v{GR+7}, {sT}
          v_mov_b32 v{GR+11}, {sT}
          L_fl:
          buffer_load_dwordx4 v[44:47], v{vFL}, s[4:7], 0 offen sc1
          s_add_u32 s54, s54, 1
          s_cmp_gt_u32 s54, {SPIN}
          s_waitcnt vmcnt(0)
          s_cbranch_scc1 L_h3
          v_cmp_ne_u64 vcc, {TP}, v[46:47]
          s_cbranch_vccnz L_fl
          L_h3:""")
    for i in range(8): e(f"buffer_load_dwordx4 v[{G+4*i}:{G+4*i+3}], v{vH3}, s[4:7], {'s50' if i >> 2 else '0'} offen offset:{1024 * (i & 3)} sc1")
    stamp(6)
    e("v_mov_b32 v52, v44")
    for s_ in (8, 4, 2, 1): e(f"v_max_f32_dpp v52, v52, v52 row_ror:{s_} row_mask:0xf bank_mask:0xf")
    e("""v_mov_b32 v53, v52
         v_permlane16_swap_b32 v52, v53
         v_max_f32 v52, v52, v53
         v_sub_f32 v52, v44, v52
         v_exp_f32 v52, v52
         v_mul_f32 v53, v52, v45""")
    E(allred32(53, 54))
    e("v_rcp_f32 v53, v53\nv_mul_f32 v52, v52, v53\nv_cvt_pk_bf16_f32 v52, v52, v52\ns_waitcnt lgkmcnt(0)")
    e.auto = True
    for i in range(4): e(f"ds_bpermute_b32 v{WP+i}, v{vBP}, v52 offset:{16 * i}")
    for i in range(4):
        for j in range(4): e(f"v_and_b32 v{WW+4*i+j}, v{WP+i}, v{vMK+j}")
    for i in range(8):
        e(f"s_waitcnt vmcnt({7 - i})")
        if i == 7: stamp(8)
        e(mf(("v", 52 + 4 * (i >> 2)), ("v", G + 4 * i), ("v", WW + 4 * (i & 3)), None if (i & 3) == 0 else ("v", 52 + 4 * (i >> 2))))
    e(f"""s_mov_b32 exec_lo, 0x00ff00ff
          s_mov_b32 exec_hi, 0x00ff00ff
          v_cvt_pk_bf16_f32 v60, v52, v53
          v_cvt_pk_bf16_f32 v61, v54, v55
          v_cvt_pk_bf16_f32 v62, v56, v57
          v_cvt_pk_bf16_f32 v63, v58, v59
          ds_write2_b64 v{vLW}, v[60:61], v[62:63] offset1:32
          s_mov_b64 exec, -1
          s_waitcnt lgkmcnt(0)
          s_barrier""")
    for k in range(8): e(f"ds_read_b128 v[{G+4*k}:{G+4*k+3}], v{vLR} offset:{64 * k}")
    for k in range(8): e(mf(("v", 52), ("a", 4 * k), ("v", G + 4 * k), None if k == 0 else ("v", 52)))
    e(f"""v_cvt_pk_bf16_f32 v60, v52, v53
          v_cvt_pk_bf16_f32 v61, v54, v55
          ds_write_b64 v{vCW}, v[60:61]
          s_waitcnt lgkmcnt(0)
          s_barrier""")
    CA, D3 = 96, 160
    for sg in range(2): e(f"ds_read_b128 v[{CA+4*sg}:{CA+4*sg+3}], v{vCR} offset:{64 * sg}")
    e("s_mov_b32 s50, 0x10000\ns_mov_b32 s51, 0x20000\ns_mov_b32 exec_hi, 0")
    def emit_out(a):
        for t in range(3):
            r = D3 + 4 * (3 * a + t)
            e(f"v_add_f32 v{GR+4*a+t}, v{r}, v{r+1}")
        e(f"buffer_store_dwordx4 v[{GR+4*a}:{GR+4*a+3}], v{vS5}, s[4:7], {'0' if a == 0 else f's{49+a}'} offen sc1")
    for t in range(9):
        for sg in range(2):
            e(mf(("v", D3 + 4 * t), ("v", CA + 4 * sg), wo_frag(sg, t), None if sg == 0 else ("v", D3 + 4 * t)))
        if t == 5: emit_out(0)
    emit_out(1); emit_out(2)
    e.auto = False
    e("s_mov_b32 exec_hi, -1")
    stamp(7)
    e("s_branch L_fin")

    e("L_a0:")
    late[0] = False
    e.dsq = []
    e(f"""s_lshr_b32 s63, {sU}, 1
          s_lshl3_add_u32 s63, {sX}, s63          ; cidx
          s_and_b32 s49, {sU}, 1                  ; hh
          s_lshl1_add_u32 s50, s63, s49
          s_lshl3_add_u32 s50, s50, {sW}
          s_lshl_b32 s47, s50, 14
          s_lshl_b32 s46, {sW}, 15""")
    srd(8, 2 * 8192 * 1024)
    FT = [2 * ((r & 7) ^ (4 * (r >> 3))) + (r >> 3) for r in range(16)]
    def slot_dma(soff, m0expr, nt=""):
        out = []
        for r in range(16):
            pre = m0expr + "\n" if r == 0 else ("s_add_u32 m0, m0, 4096\n" if r % 4 == 0 else "")
            off = f" offset:{(r & 3) * 1024}" if r & 3 else ""
            out.append(pre + f"buffer_load_dwordx4 v{vDA + r}, s[8:11], {soff} offen{off} {nt} lds")
        return out
    s0 = slot_dma("s47", "s_mov_b32 m0, s46")
    xo = [f"v_xor_b32 v{vDA + r}, {FT[r] * 16 + (r >> 2) * 4096}, v3" for r in range(16)]
    if touch_uk:
        e(f"""v_lshrrev_b32 v4, 1, v0
              v_and_b32 v5, 1, v0
              v_lshlrev_b32 v4, 13, v4
              v_lshl_add_u32 v4, v5, 7, v4
              s_lshl_b32 s51, s38, 8
              s_add_u32 s45, s44, s51
              s_add_u32 s45, s45, {3 << 18}
              s_lshl_b32 s53, s39, 20
              s_add_u32 s53, s53, s51
              s_and_b32 s50, s39, 1
              s_lshl2_add_u32 s50, s50, {sW}
              s_cmp_lg_u32 s50, 1
              s_waitcnt lgkmcnt(0)
              s_cbranch_scc1 L_a_nt
              buffer_load_dword v5, v4, s[20:23], s45 offen
              L_a_nt:""")
        first = ["buffer_load_dword v5, v4, s[12:15], s53 offen      ; w_uk tile of the neighbouring QV workgroup -> L2"] + s0[:4]
        NEARLY = 4
        E(xo)
    else:
        E(xo[:8]); e("s_waitcnt lgkmcnt(0)"); E(s0[:8]); E(xo[8:]); first = []; NEARLY = 8
    stamp(10)
    load_epoch()
    def setup():
        e(f"""s_load_dwordx2 s[16:17], s[0:1], 72
          s_load_dwordx2 s[24:25], s[0:1], 64
          s_load_dwordx2 s[40:41], s[0:1], 88
          v_and_b32 v54, 15, v1                   ; rho
          v_lshrrev_b32 v52, 3, v54
          v_lshlrev_b32 v7, 2, v52
          v_xor_b32 v7, v7, v54
          v_and_b32 v7, 7, v7
          v_lshl_or_b32 v7, v7, 1, v52            ; f(rho)
          v_xor_b32 v7, v7, v2
          v_lshlrev_b32 v7, 4, v7
          v_lshl_add_u32 v7, v54, 10, v7
          v_add_u32 v{vQK}, s46, v7""")
        for m in range(1, 4): e(f"v_xor_b32 v{vQK+m}, {64 * m}, v{vQK}")
        e(f"""v_lshrrev_b32 v53, 2, v1                ; key = 4g+r
          v_lshrrev_b32 v52, 5, v1
          v_lshlrev_b32 v7, 2, v52
          v_xor_b32 v7, v7, v53
          v_and_b32 v7, 7, v7
          v_lshl_or_b32 v7, v7, 1, v52            ; f(key)
          v_lshlrev_b32 v7, 1, v7
          v_and_b32 v52, 3, v1
          v_xor_b32 v7, v7, v52
          v_lshlrev_b32 v7, 3, v7
          v_lshl_add_u32 v7, v53, 10, v7
          s_lshl_b32 s50, {sW}, 8
          v_add_u32 v{vPV}, s50, v7""")
        for ct in range(1, 8): e(f"v_xor_b32 v{vPV+ct}, {32 * ct}, v{vPV}")
        for ct in range(8): e(f"v_add_u32 v{vPV+8+ct}, 0x10000, v{vPV+ct}")
        e(f"""v_lshrrev_b32 v52, 2, v54
          v_lshlrev_b32 v52, 1, v52
          s_movk_i32 s51, 0x78
          v_bfe_u32 v52, s51, v52, 2
          v_xor_b32 v52, v52, v2
          v_lshlrev_b32 v52, 4, v52
          v_lshl_add_u32 v52, v54, 6, v52
          v_add_u32 v{vQRd}, {QX}, v52
          v_lshlrev_b32 v52, 3, v1
          v_and_b32 v53, 32, v1
          v_xor_b32 v52, v52, v53
          s_lshl_b32 s50, {sW}, 12
          s_add_u32 s50, s50, {QX}
          v_add_u32 v{vQW8}, s50, v52
          v_xor_b32 v{vQW8+1}, {48 + 512}, v{vQW8}""")
        for i in range(2, 8): e(f"v_add_u32 v{vQW8+i}, {1024 * (i >> 1)}, v{vQW8 + (i & 1)}")
        e(f"""s_lshr_b32 s50, s63, 5
          s_lshl1_add_u32 s50, s50, s49
          s_lshl2_add_u32 s50, s50, {sW}
          s_lshl_b32 s50, s50, 13
          s_add_u32 s50, s50, {WS_Q}
          v_add_u32 v{vQL}, s50, v3
          v_add_u32 v{vXW}, {PX}, v3
          s_lshl_b32 s51, {sW}, 10
          v_add_u32 v{vPWr}, s51, v{vXW}
          v_lshlrev_b32 v52, 4, v54
          v_add_u32 v{vMR}, {MX}, v52
          s_lshl_b32 s50, {sW}, 2
          v_add_u32 v{vMW}, s50, v{vMR}""")
        if wgflag: e("s_lshl1_add_u32 s51, s63, s49")
        else: e(f"s_lshl2_add_u32 s51, s49, {sW}\ns_lshl_b32 s51, s51, 6\ns_add_u32 s51, s51, s63")
        e(f"""s_lshl_b32 s51, s51, 8
          s_add_u32 s51, s51, {WS_FL}
          v_add_u32 v{vFS}, s51, v52
          v_lshl_add_u32 v52, v2, 18, v52
          s_lshl_b32 s50, s49, 6
          s_add_u32 s50, s50, {sW}
          s_lshl_b32 s50, s50, 6
          s_add_u32 s50, s50, s63
          s_lshl_b32 s50, s50, 8
          s_add_u32 s50, s50, {WS_H3}
          v_add_u32 v{vRS}, s50, v52
          s_lshr_b32 s50, {sU}, 2
          s_mul_i32 s50, s50, 144
          s_mul_i32 s51, {sX}, 576
          s_add_u32 s50, s50, s51
          s_lshl2_add_u32 s58, s39, s50
          s_mul_i32 s59, s58, 1152
          s_movk_i32 s50, {18432 - 4608}
          v_mul_u32_u24 v52, 1821, v0
          v_lshrrev_b32 v52, 16, v52              ; tid / 36
          v_lshlrev_b32 v53, 7, v0
          v_mad_u32_u24 v{vT0}, v52, s50, v53
          v_min_u32 v53, 67, v0
          v_add_u32 v53, 256, v53
          v_mul_u32_u24 v52, 1821, v53
          v_lshrrev_b32 v52, 16, v52
          v_lshlrev_b32 v53, 7, v53
          v_mad_u32_u24 v{vT0+1}, v52, s50, v53
          s_xor_b32 s45, s47, 0x20000
          s_mul_i32 s62, {sW}, 9216""")
        srd(4, WS_BYTES); srd(16, 4608 * 1152); srd(24, 9216); srd(40, 2304)
    def capture(fn):
        n = len(e.ins); fn(); out = [x.text for x in e.ins[n:] if x.op != "s_nop"]; del e.ins[n:]; return out
    sa_ = capture(setup); cutp = int(len(sa_) * tpos)
    E(sa_[:cutp]); E(first); E(sa_[cutp:])
    e("s_load_dwordx2 s[20:21], s[0:1], 80\ns_movk_i32 s22, 1152\ns_waitcnt lgkmcnt(0)")
    make_tag()
    if early: stamp(13)
    E(s0[NEARLY:])
    e("s_add_u32 s47, s47, 0x10000")
    E(slot_dma("s47", "s_add_u32 m0, s46, 0x4000"))
    stamp(1)
    def qk_reads(f, r0, sp):
        return [f"ds_read_b128 {f}[{r0+4*k}:{r0+4*k+3}], v{vQK + (k & 3)} offset:{sp * 16384 + (k >> 2) * 256}" for k in range(16)]
    def pv_read(base, k, ct, sp):
        r = base + (k * 8 + ct) * 4 + 2 * sp
        return f"ds_read_b64_tr_b16 a[{r}:{r+1}], v{vPV + ct + 8 * (k >> 1)} offset:{(k & 1) * 32768 + sp * 16384}"
    def frags(sp):
        return qk_reads("a", sp * 64, sp) + [pv_read(128, k, ct, sp) for k in range(4) for ct in range(8)]
    def qloads():
        for i in range(8):
            e(f"buffer_load_dwordx4 v[{QS+4*i}:{QS+4*i+3}], v{vQL}, s[4:7], {'s55' if i >= 4 else '0'} offen offset:{(i & 3) * 1024} sc1")
    def qcheck():
        for i in range(8): e(f"v_bitop3_b32 v{52+i}, v{QS+4*i+1}, v{QS+4*i+3}, {sT} bitop3:0x7e")
        e("""v_or3_b32 v52, v52, v53, v54
             v_or3_b32 v55, v55, v56, v57
             v_or3_b32 v52, v52, v58, v59
             v_or_b32 v52, v52, v55
             v_cmp_ne_u32 vcc, 0, v52""")
    e("s_movk_i32 s55, 4096\ns_waitcnt vmcnt(16)\ns_barrier")
    E(frags(0))
    e("s_add_u32 s44, s45, 0x10000\ns_waitcnt lgkmcnt(0)\ns_barrier")
    stamp(2)
    dm = slot_dma("s45", "s_mov_b32 m0, s46", nt2) + slot_dma("s44", "s_add_u32 m0, s46, 0x4000", nt2)
    if qa <= 8:
        E(dm[:qa]); qloads()
        e(f"s_waitcnt vmcnt({qa + 8})\ns_barrier")
        stamp(14)
        E(weave(frags(1), dm[qa:qb], every=5))
    else:
        E(dm[:8])
        e(f"s_waitcnt vmcnt(8)\ns_barrier")
        stamp(14)
        E(weave(frags(1), dm[8:min(qa, 16)], every=5))
        if qb > 16: e("s_waitcnt lgkmcnt(0)\ns_barrier")
        E(dm[16:qa]); qloads(); E(dm[qa:qb])
    assert qb <= 16 or qa > 8
    late[0] = True
    stamp(3)
    e(f"s_mov_b32 s54, 0\ns_waitcnt vmcnt({qb - qa})\ns_branch L_q_chk\nL_q_retry:")
    qloads()
    e(f"s_add_u32 s54, s54, 1\ns_cmp_gt_u32 s54, {SPIN}\ns_waitcnt vmcnt(0)\ns_cbranch_scc1 L_q_ok\nL_q_chk:")
    qcheck()
    e("s_and_b64 exec, exec, vcc\ns_cbranch_execnz L_q_retry\nL_q_ok:\ns_mov_b64 exec, -1")
    for i in range(8): e(f"ds_write2_b32 v{vQW8+i}, v{QS+4*i}, v{QS+4*i+2} offset1:1")
    if stamps: e("s_add_u32 s84, s64, s54")
    e("s_waitcnt lgkmcnt(0)\ns_barrier")
    stamp(4)
    e.dsq = []; e.auto = True
    qr = [f"ds_read_b128 v[{QF+4*k}:{QF+4*k+3}], v{vQRd} offset:{1024 * k}" for k in range(16)]
    def slots(main, sides):
        for i, m in enumerate(main):
            e(m)
            for x in sides.get(i, []): e(x)
    tile = lambda sr, fr: [mf(("v", sr), fr(k), ("v", QF + 4 * k), None if k == 0 else ("v", sr)) for k in range(16)]
    t3f = lambda k: ("v", QS + 4 * k) if k < 8 else ("a", 4 * (k - 8))
    t3r = [f"ds_read_b128 {t3f(k)[0]}[{t3f(k)[1]}:{t3f(k)[1]+3}], v{vQK + (k & 3)} offset:{16384 + (k >> 2) * 256}" for k in range(16)]
    rest = dm[qb:]
    E(qr[:6]); E(rest[:2])
    sa = {}
    for k in range(10): sa.setdefault(2 * k, []).append(qr[k + 6])
    for i, x in enumerate(rest[2:10]): sa.setdefault(4 * i + 3, []).append(x)
    slots([m for pair in zip(tile(S, lambda k: ("a", 4 * k)), tile(S + 4, lambda k: ("a", 64 + 4 * k))) for m in pair], sa)
    done = min(32, qb + 10)
    mid = max(done, 24)
    E(dm[done:mid])
    e(f"s_waitcnt vmcnt({mid - 16})\ns_barrier")
    stamp(11)
    t2r = qk_reads("v", T2, 0)
    early_r = [(k, ct, 0) for k in (1, 2, 3) for ct in range(8)]
    E(weave(t2r, dm[mid:], every=2))
    mx = [f"v_max3_f32 v55, v{S}, v{S+1}, v{S+2}", f"v_max3_f32 v55, v55, v{S+3}, v{S+4}", f"v_max3_f32 v55, v55, v{S+5}, v{S+6}",
          f"v_max3_f32 v55, v55, v{S+7}, v{S+8}", f"v_max3_f32 v55, v55, v{S+9}, v{S+10}", f"v_max_f32 v55, v55, v{S+11}"]
    t2 = tile(S + 8, lambda k: ("v", T2 + 4 * k)); t3 = tile(S + 12, t3f)
    e("s_waitcnt lgkmcnt(4)")
    er = [pv_read(0, *x) for x in early_r]
    slots(t2[:12], {i: er[2 * i:2 * i + 2] for i in range(12)})
    e("s_waitcnt vmcnt(0)")
    stamp(12)
    E(t3r[:8])
    slots(t2[12:], {i: t3r[8 + 2 * i:10 + 2 * i] for i in range(4)})
    if w2touch: e(f"buffer_load_dword v62, v{vT0}, s[16:19], s59 offen" + (f"\nbuffer_load_dword v63, v{vT0+1}, s[16:19], s59 offen" if w2touch > 1 else ""))
    e.auto = False
    for k in range(16):
        if k % 4 == 0: e(f"s_waitcnt lgkmcnt({12 - k})")
        e(t3[k])
        if 8 <= k < 14: e(mx[k - 8])
    e.auto = True
    e(f"""s_mov_b32 s56, 0x10000
          s_mov_b32 s57, 0x20000
          s_mov_b32 s52, 0x30000
          v_max3_f32 v55, v55, v{S+12}, v{S+13}
          v_max3_f32 v55, v55, v{S+14}, v{S+15}
          v_mov_b32 v56, v55
          v_permlane32_swap_b32 v55, v56
          v_max_f32 v55, v55, v56
          v_mov_b32 v56, v55
          v_permlane16_swap_b32 v55, v56
          v_max_f32 v55, v55, v56
          ds_write_b32 v{vMW}, v55
          s_waitcnt lgkmcnt(0)
          s_barrier
          ds_read_b128 v[56:59], v{vMR}""")
    late_r = [pv_read(0, k, ct, sp) for ct in range(8) for k in range(4) for sp in range(2) if (k, ct, sp) not in early_r]
    E(late_r[:8])
    e(f"""v_mov_b32 v52, 0x3f803f80
          v_mov_b32 v53, v52
          v_mov_b32 v54, v52
          v_mov_b32 v55, v52
          v_max3_f32 v60, v56, v57, v58
          v_max_f32 v60, v60, v59""")
    def expo(hf):
        s_ = S + 8 * hf
        return [f"v_pk_add_f32 v[{s_+2*i}:{s_+2*i+1}], v[{s_+2*i}:{s_+2*i+1}], v[60:61] op_sel_hi:[1,0] neg_lo:[0,1] neg_hi:[0,1]" for i in range(4)] + \
               [f"v_exp_f32 v{s_+i}, v{s_+i}" for i in range(8)] + \
               [f"v_cvt_pk_bf16_f32 v{PK+4*hf+i}, v{s_+2*i}, v{s_+2*i+1}" for i in range(4)] + \
               [f"ds_write_b128 v{vPWr}, v[{PK+4*hf}:{PK+4*hf+3}] offset:{4096 * hf}"]
    pr = lambda hf: [f"ds_read_b128 v[{P_+16*hf+4*k}:{P_+16*hf+4*k+3}], v{vXW} offset:{4096 * hf + 1024 * k}" for k in range(4)]
    pv0 = [mf(("v", O + 4 * ct), ("v", P_ + 4 * k), ("a", 128 + (k * 8 + ct) * 4), None if k == 0 else ("v", O + 4 * ct)) for k in range(4) for ct in range(8)]
    pv1 = [mf(("v", O + 4 * ct), ("v", P_ + 16 + 4 * k), ("a", (k * 8 + ct) * 4), ("v", O + 4 * ct)) for ct in range(8) for k in range(4)]
    def rst(r): return f"buffer_store_dwordx4 v[{REC+4*r}:{REC+4*r+3}], v{vRS}, s[4:7], {('0', 's56', 's57', 's52')[r]} offen sc1"
    def epi(j): return [f"v_cvt_pk_bf16_f32 v{REC+4*r+j}, v{O+8*j+r}, v{O+8*j+4+r}" for r in range(4)]
    x1 = expo(1)
    E(expo(0)); E(x1[:8])
    e("s_waitcnt lgkmcnt(0)\ns_barrier")
    E(pr(0)); E(x1[8:])
    stamp(13)
    e("s_waitcnt lgkmcnt(1)")
    e.auto = False
    sb = {4: ["s_waitcnt lgkmcnt(0)\ns_barrier"] + pr(1)}
    for i in range(24): sb.setdefault(7 + i, []).append(late_r[8 + i])
    slots(pv0, sb)
    sd = {i: [late_r[32 + i]] for i in range(8)}
    sd[15] = ["s_waitcnt lgkmcnt(0)"]
    for r in range(4):
        sd.setdefault(16 + r, []).append(epi(0)[r]); sd.setdefault(23 + r, []).append(epi(1)[r])
    e("s_waitcnt lgkmcnt(4)")
    slots(pv1, sd)
    lm = [mf(("v", 56), ("v", 52), ("v", P_ + 4 * k), None if k == 0 else ("v", 56)) for k in range(8)]
    E(weave(lm[:2], epi(2), per=2))
    for r in range(4): E([epi(3)[r], rst(r)])
    stamp(5)
    E(lm[2:])
    vW2, vTk, vT16k, vM5, vHA, vHA16 = 8, 18, 22, 26, 27, 28
    d9_addrs(None, vW2, 18432 - 4608, 2, 64)
    d9_extra(vW2 + 9, None, 2, 64)
    e(f"""s_add_u32 s57, s59, {4 * 36864}
          s_lshl2_add_u32 s53, s62, s59
          s_lshl4_add_u32 s50, {sX}, {sU}
          s_mul_i32 s50, s50, 3
          s_add_u32 s50, s50, {sW}
          s_lshl_b32 s50, s50, 11
          s_add_u32 s59, s50, {WS_HM}
          v_and_b32 v29, 3, v1
          v_lshl_add_u32 v30, v2, 4, v29          ; 16g+e
          s_mul_i32 s50, {sW}, 48
          s_add_u32 s50, s50, s58
          v_add_lshl_u32 v31, v30, s50, 1
          v_mov_b32 v{S}, v60
          v_mov_b32 v{S+1}, v56
          v_mov_b32 v{S+2}, s36
          v_mov_b32 v{S+3}, s37""")
    fst = f"s_mov_b64 exec, 0xffff\nbuffer_store_dwordx4 v[{S}:{S+3}], v{vFS}, s[4:7], 0 offen sc1\ns_mov_b64 exec, -1"
    hml = f"""buffer_load_ushort v32, v31, s[24:27], 0 offen
          buffer_load_dwordx4 v[64:67], v3, s[4:7], s59 offen sc1
          buffer_load_dwordx4 v[68:71], v3, s[4:7], s59 offen offset:1024 sc1"""
    if wgflag:
        e(f"s_cmp_lg_u32 {sW}, 3\ns_waitcnt vmcnt(0)\ns_barrier\ns_cbranch_scc1 L_kv_w012\n{fst}\ns_branch L_kv_nx2\nL_kv_w012:\n{hml}\nL_kv_nx2:")
        stamp(6)
    else:
        e(f"s_waitcnt vmcnt(0)\n{fst}")
        stamp(6)
        e(f"s_cmp_eq_u32 {sW}, 3\ns_barrier\ns_cbranch_scc1 L_kv_nx2\n{hml}\nL_kv_nx2:")
    E(dmx(vW2, 16, "s53", 0, ntv) + dma_extra(vW2, 16, "s57", 4 * 9216, ntv))
    e(f"""s_mul_i32 s44, {sX}, 12
          s_add_u32 s44, s44, {sU}                ; r
          s_lshr_b32 s50, s44, 3
          s_mul_i32 s50, s50, 48
          s_and_b32 s51, s44, 3
          s_lshl2_add_u32 s50, s51, s50
          v_add_lshl_u32 v33, v30, s50, 1
          s_bfe_u32 s51, s44, 0x10002
          s_mul_i32 s48, s51, 1152
          v_lshlrev_b32 v34, 4, v0
          s_lshl_b32 s45, s44, 13
          s_add_u32 s46, s45, {WS_H5M}
          s_add_u32 s47, s46, 4096
          v_lshl_add_u32 v35, v2, 2, v29
          v_lshlrev_b32 v35, 4, v35
          v_add_u32 v35, {FX}, v35
          s_lshl_b32 s50, {sW}, 2
          v_add_u32 v36, s50, v35""")
    t9_addrs(vTk, vT16k, 0, 72)
    h5_store_addr(vM5, WS_H5M, 72)
    e(f"""v_and_b32 v37, 4, v1
          v_mul_u32_u24 v38, 34, v37
          v_add_u32 v{vHA16}, {HX}, v38
          v_lshl_add_u32 v{vHA}, v2, 3, v{vHA16}
          s_cmp_eq_u32 {sW}, 3
          s_cbranch_scc1 L_kv_nx3
          s_mov_b32 s54, 0
          s_waitcnt vmcnt(11)
          L_hm:
          v_bitop3_b32 v39, v67, v71, {sT} bitop3:0x7e
          v_cmp_ne_u32 vcc, 0, v39
          s_cbranch_vccz L_hm_done
          buffer_load_dwordx4 v[64:67], v3, s[4:7], s59 offen sc1
          buffer_load_dwordx4 v[68:71], v3, s[4:7], s59 offen offset:1024 sc1
          s_add_u32 s54, s54, 1
          s_cmp_le_u32 s54, {SPIN}
          s_waitcnt vmcnt(0)
          s_cbranch_scc1 L_hm
          L_hm_done:""")
    red16(64); red16(68)
    c1 = -2 * math.sqrt(2 / math.pi) * math.log2(math.e)
    e(f"""v_cmp_ne_u32 vcc, 0, v37
          v_lshlrev_b32 v32, 16, v32
          v_cndmask_b32 v64, v64, v68, vcc""")
    rbf("v64", "v64")
    e("v_add_f32 v64, v64, v32")
    rbf("v64", "v64")
    e(f"""v_mul_f32 v65, v64, v64
          v_mov_b32 v66, {f32(c1)}
          v_fmac_f32 v66, {f32(c1 * 0.044715)}, v65
          v_mul_f32 v65, v66, v64
          v_exp_f32 v65, v65
          v_add_f32 v65, 1.0, v65
          v_rcp_f32 v65, v65
          v_mul_f32 v64, v64, v65
          v_cvt_pk_bf16_f32 v64, v64, v64
          v_lshl_add_u32 v39, v29, 1, v{vHA}
          s_mul_i32 s50, {sW}, 24
          v_add_u32 v39, s50, v39
          s_mov_b32 exec_hi, 0xffff
          ds_write_b16 v39, v64
          s_mov_b32 exec_hi, -1
          L_kv_nx3:""")
    e(f"""s_cmp_ge_u32 {sU}, 12
          s_cbranch_scc1 L_kv_nx4
          buffer_load_ushort v40, v33, s[20:23], 0 offen
          buffer_load_ushort v41, v33, s[28:31], s48 offen""")
    if pretouch:
        e(f"""s_add_u32 s50, s45, {WS_H5S}
              v_lshlrev_b32 v42, 5, v0
              buffer_load_dword v43, v42, s[4:7], s50 offen sc1""")
    e(f"""s_waitcnt vmcnt({3 if pretouch else 2})
          s_branch L_kv_nx5
          L_kv_nx4:
          s_waitcnt vmcnt(0)
          L_kv_nx5:
          s_waitcnt lgkmcnt(0)
          s_barrier""")
    e.dsq = []
    stamp(15)
    gemv36(vTk, 0, vT16k, vHA, vHA16, 64, 120, 160, vM5, 65536)
    stamp(7)
    e(f"""s_cmp_ge_u32 {sU}, 12
          s_cbranch_scc1 L_fin
          s_add_u32 s56, s45, {WS_H5S}
          s_add_u32 s57, s56, 4096
          s_mov_b32 s54, 0
          s_waitcnt vmcnt(0)
          L_f_m:
          buffer_load_dwordx4 v[64:67], v34, s[4:7], s46 offen sc1
          buffer_load_dwordx4 v[68:71], v34, s[4:7], s47 offen sc1
          s_add_u32 s54, s54, 1
          s_cmp_gt_u32 s54, {SPIN}
          s_waitcnt vmcnt(0)
          s_cbranch_scc1 L_f_md
          v_bitop3_b32 v63, v67, v71, {sT} bitop3:0x7e
          v_cmp_ne_u32 vcc, 0, v63
          s_and_b64 exec, exec, vcc
          s_cbranch_execnz L_f_m
          L_f_md:
          s_mov_b64 exec, -1
          buffer_load_dwordx4 v[72:75], v34, s[4:7], s56 offen sc1
          buffer_load_dwordx4 v[76:79], v34, s[4:7], s57 offen sc1""")
    def fin_red(a, off):
        e(f"v_add_f32 v{a}, v{a}, v{a+4}\nv_add_f32 v{a+1}, v{a+1}, v{a+5}\nv_add_f32 v{a+2}, v{a+2}, v{a+6}")
        red16(a)
        e(f"""ds_write_b32 v36, v{a} offset:{off}
              s_waitcnt lgkmcnt(0)
              s_barrier
              ds_read_b128 v[64:67], v35 offset:{off}
              s_waitcnt lgkmcnt(0)
              v_add_f32 v64, v64, v65
              v_add_f32 v66, v66, v67
              v_add_f32 v64, v64, v66""")
        rbf("v64", "v64")
    fin_red(64, 0)
    e(f"v_lshlrev_b32 v40, 16, v40\nv_add_f32 v64, v64, v40")
    rbf("v64", "v64")
    e(f"""v_mul_f32 v65, {f32(-math.log2(math.e))}, v64
          v_exp_f32 v65, v65
          v_add_f32 v65, 1.0, v65
          v_rcp_f32 v65, v65
          v_mul_f32 v40, v64, v65""")
    rbf("v40", "v40")
    e("v_lshlrev_b32 v41, 16, v41")
    stamp(8)
    e(f"""s_mov_b32 s54, 0
          s_branch L_f_sw
          L_f_s:
          buffer_load_dwordx4 v[72:75], v34, s[4:7], s56 offen sc1
          buffer_load_dwordx4 v[76:79], v34, s[4:7], s57 offen sc1
          L_f_sw:
          s_add_u32 s54, s54, 1
          s_cmp_gt_u32 s54, {SPIN}
          s_waitcnt vmcnt(0)
          s_cbranch_scc1 L_f_sd
          v_bitop3_b32 v63, v75, v79, {sT} bitop3:0x7e
          v_cmp_ne_u32 vcc, 0, v63
          s_and_b64 exec, exec, vcc
          s_cbranch_execnz L_f_s
          L_f_sd:
          s_mov_b64 exec, -1""")
    fin_red(72, 256)
    e(f"""
          v_mul_f32 v64, v64, v40""")
    rbf("v64", "v64")
    e(f"""v_add_f32 v64, v41, v64
          v_cvt_pk_bf16_f32 v64, v64, v64
          s_cmp_lg_u32 {sW}, 0
          s_cbranch_scc1 L_fin
          s_mov_b32 exec_lo, 0x000f000f
          s_mov_b32 exec_hi, 0x0000000f
          buffer_store_short v64, v33, s[40:43], s48 offen {outsc}
          s_cmp_lg_u32 s44, 0
          s_cbranch_scc1 L_fin
          s_mov_b64 exec, 1
          v_mov_b32 v65, {sT}
          v_mov_b32 v66, {WS_EPOCH}
          buffer_store_dword v65, v66, s[4:7], 0 offen {outsc}""")
    e("L_fin:")
    if pad:
        role, k = pad
        if role == 3:
            e(f"s_cmp_lg_u32 {sX}, {k - 100}\ns_cbranch_scc1 L_end")
            k = 0
        e(f"""s_waitcnt lgkmcnt(0)
              s_bfe_u32 s50, s2, 0x10003
              s_cmp_eq_u32 s50, {role}
              s_cselect_b32 s50, s{64 + 2 * k}, s64
              s_add_u32 s50, s50, 4000
              s_mov_b32 s54, 0
              L_pad:
              s_add_u32 s54, s54, 1
              s_cmp_gt_u32 s54, 100000
              s_cbranch_scc1 L_end
              s_memrealtime s[52:53]
              s_waitcnt lgkmcnt(0)
              s_sub_u32 s51, s52, s50
              s_cmp_lt_i32 s51, 0
              s_cbranch_scc1 L_pad""")
    if stamps:
        stamp(9)
        e("s_mov_b64 exec, -1\ns_waitcnt lgkmcnt(0)")
        for k in range(16): e(f"v_mov_b32 v{64+k}, s{64 + 2 * k}")
        e(f"""s_lshl2_add_u32 s50, s2, {sW}
              s_lshl_b32 s50, s50, 6
              s_add_u32 s50, s50, {STAMP_OFF}
              v_mov_b32 v63, 0
              s_mov_b64 exec, 1
              buffer_store_dwordx4 v[64:67], v63, s[4:7], s50 offen
              buffer_store_dwordx4 v[68:71], v63, s[4:7], s50 offen offset:16
              buffer_store_dwordx4 v[72:75], v63, s[4:7], s50 offen offset:32
              buffer_store_dwordx4 v[76:79], v63, s[4:7], s50 offen offset:48""")
    e("L_end:\ns_endpgm")
    head = f"""; Persistent single-launch kernel: absorbed-MLA decode attention + channel MLP (generated by gen/gen11.py)
; @launch grid=(256,1,1) block=(256,1,1) lds=163840
.amdgcn_target "amdgcn-amd-amdhsa--gfx950"
.text
.globl {K}
.p2align 8
.type {K},@function
"""
    tail = f""".section .rodata,"a"
.p2align 6
.amdhsa_kernel {K}
  .amdhsa_next_free_vgpr 512
  .amdhsa_next_free_sgpr 96
  .amdhsa_accum_offset 256
  .amdhsa_group_segment_fixed_size 0
  .amdhsa_kernarg_size 112
  .amdhsa_user_sgpr_count 2
  .amdhsa_user_sgpr_kernarg_segment_ptr 1
  .amdhsa_system_sgpr_workgroup_id_x 1
.end_amdhsa_kernel
"""
    return head + e.text() + tail

if __name__ == "__main__":
    out = sys.argv[1]
    kw = {}
    for a in sys.argv[2:]:
        k, v = a.split("=", 1)
        kw[k] = eval(v)
    open(out, "w").write(gen(**kw))
```
